```python
import torch

def _softmax(x, axis=-1):
    return torch.softmax(x, dim=axis)
def _gelu(x):
    return torch.nn.functional.gelu(x, approximate="tanh")
def _silu(x):
    return torch.nn.functional.silu(x)
def _sigmoid(x):
    return torch.sigmoid(x)
def _layernorm(x, axis=-1, eps=1e-5):
    m = x.mean(dim=axis, keepdim=True)
    v = x.var(dim=axis, keepdim=True, unbiased=False)
    return (x - m) / torch.sqrt(v + eps)
def _scatter_add(tgt, idx, src, axis=0):
    return tgt.clone().index_add_(axis, idx, src)
def _segment_sum(src, seg, n):
    out = torch.zeros((n,) + src.shape[1:], dtype=src.dtype)
    return out.index_add_(0, seg, src)
def _pad(x, pw):
    flat = tuple(v for pair in reversed(pw) for v in pair)
    return torch.nn.functional.pad(x, flat)

kernel_name = 'standalone__self_sup_conv_stem_hubert__speech'

def setup_inputs():

    _w = (lambda a: (lambda t: t.to(torch.bfloat16) if t.is_floating_point() else t)(torch.as_tensor(a)))
    B, T, D, K = 2, 16000, 144, 31
    scale = (1.0 / (K * D)) ** 0.5
    return {
        "x": _w((lambda *s: torch.randn(*s, dtype=torch.bfloat16) * 0.05)(B, T, D)),
        "w": _w((lambda *s: torch.randn(*s, dtype=torch.bfloat16) * 0.05)(K, D, D) * scale),
        "b": _w((lambda *s: torch.randn(*s, dtype=torch.bfloat16) * 0.05)(D) * 0.1),
        "gamma": _w(torch.ones((D,), dtype=float)),
        "beta": _w(torch.zeros((D,), dtype=float)),
    }

def reference(x, w, b, gamma, beta):
    B, T, D = x.shape
    K = w.shape[0]
    s = 2
    L = (T - K) // s + 1
    y = torch.einsum('blc,cd->bld', x[:, 0 : s * L : s, :], w[0])
    for i in range(1, K):
        y = y + torch.einsum('blc,cd->bld', x[:, i : i + s * L : s, :], w[i])
    y = y + b[None, None, :]
    mu = y.mean(1, keepdims=True)
    var = ((y - mu) ** 2).mean(1, keepdims=True)
    yn = (y - mu) / torch.sqrt(var + 1e-5)
    yn = yn * gamma[None, None, :] + beta[None, None, :]
    return _gelu(yn)
```

```python
import sys, json

KNAME = "standalone__self_sup_conv_stem_hubert__speech"
L = 7985
NT = 42
XBATCH = 4608000
WBYTES = 1285632

XGRP = 416
XREG = 35 * XGRP
NXS = 4
WBASE = NXS * XREG
WSLOT = 3072
NWS = 16
FLAG = WBASE + 2 * NWS * WSLOT
READY = FLAG
CONS = FLAG + 256
PART = CONS + 1024
SCSH = PART + 1536
LDS_END = SCSH + 384
LDS_BYTES = 163840
assert LDS_END <= LDS_BYTES

REC = 384
GRP_STRIDE = 48 * REC
STAMP_OFF = 0x1000000

V_XA, V_WB, V_RDY, V_CONSA, V_F, V_C, V_T0, V_T1, V_LANE, V_OUT, V_EX = 1, 2, 3, 4, 5, 6, 7, 8, 9, 10, 11
ACC, BF, AF = 16, 88, 100
S_WAVE, S_T, S_B, S_TB, S_U = 40, 41, 42, 43, 44
S_F = 48
SRD_X, SRD_W, SRD_O, SRD_WS, SRD_DBG = 20, 24, 28, 32, 36


def lam(i):
    return (4 + 5 * i) % 9


def runs_for(kh):
    runs = []
    for s in range(9):
        if s < 5:
            cut, n = 8, 16
        else:
            cut, n = (8 if s % 2 else 7), 15
        runs.append((s, 0, cut) if kh == 0 else (s, cut, n - cut))
    return runs


class Cfg:
    stamps = False
    snake = True
    code_pf = True
    w_mall_pf = True
    w_l2_pf = True
    x_stage_ofs = 0
    prio = True
    safe = True

    def __init__(self, **kw):
        for k, v in kw.items():
            assert hasattr(Cfg, k), k
            setattr(self, k, v)


def bail(o, cfg, limit=400000):
    if cfg.safe:
        o("s_add_u32 s80, s80, 1")
        o(f"s_cmp_gt_u32 s80, {limit}")
        o("s_cbranch_scc1 L_end")


class Out:
    def __init__(self):
        self.l = []

    def __call__(self, s):
        self.l.append("    " + s)

    def label(self, s):
        self.l.append(s + ":")

    def raw(self, s):
        self.l.append(s)

    def text(self):
        return "\n".join(self.l)


def loader_plan(cfg):
    steps = [[(s, p0 + k) for (s, p0, n) in runs_for(kh) for k in range(n)] for kh in range(2)]
    stages = []
    stages.append([('W', 0, 0), ('W', 1, 0), ('X', 0), ('X', 1)])
    stages.append([('W', 0, 1), ('W', 1, 1)])
    stages.append([('W', 0, 2), ('W', 1, 2)])
    stages.append([('W', 0, 3), ('W', 1, 3)])
    i = 4
    while i < 70:
        stages.append([('W', 0, i), ('W', 1, i), ('W', 0, i + 1), ('W', 1, i + 1)])
        i += 2
    first_step = {}
    for kh in range(2):
        for i, (s, p) in enumerate(steps[kh]):
            first_step[s] = min(first_step.get(s, 99), i) if (s in first_step) else i
    stage_of_step = {}
    for k, st in enumerate(stages):
        for b in st:
            if b[0] == 'W':
                stage_of_step[b[2]] = k
    for reg in range(2, 10):
        s = reg - 2
        k = stage_of_step[first_step[s]] + cfg.x_stage_ofs
        if s == 0:
            k = 3
        stages[k].append(('X', reg))
        if cfg.w_l2_pf and s + 1 < 9:
            stages[k].append(('PF', s + 1))
    stages.append([('EX',)])
    return steps, stages


def a_offset(s, rho):
    par, pi = rho & 1, rho >> 1
    hh = 9 * par + s
    h = hh & 1
    reg = s if h == 1 else s + 1
    assert lam(reg) == hh >> 1
    return reg, (reg % NXS) * XREG + (pi // 3) * XGRP + (pi % 3) * 128 + 64 * h


def compute_items(cfg, kh):
    runs = runs_for(kh)
    items = []

    def rdA(run, phi):
        s, p0, n = runs[run]
        reg, off = a_offset(s, p0 + phi)
        return ('rdA', phi, off, ('X', reg))

    def rdB(i, t):
        return [('rdB', t, h, (i % NWS) * WSLOT + 1536 * h + 8 * t, ('W', kh, i)) for h in range(2)]

    items.append(('seg', -1))
    for t in range(2):
        items += rdB(0, t)
    for phi in range(6):
        items.append(rdA(0, phi))
    i = 0
    for rn, (s, p0, n) in enumerate(runs):
        for sg in range(n):
            al = []
            if sg < 4:
                al += [rdA(rn, phi) for phi in (6 + 2 * sg, 7 + 2 * sg) if phi <= n + 4]
            if rn + 1 < len(runs) and sg >= n - 3:
                q = sg - (n - 3)
                al += [rdA(rn + 1, 2 * q), rdA(rn + 1, 2 * q + 1)]
            assert len(al) <= 3
            for t in range(3):
                order = list(range(6))
                if cfg.snake and t == 1:
                    order = order[::-1]
                if t == 0:
                    extra = rdB(i, 2)
                else:
                    extra = rdB(i + 1, t - 1) if i + 1 < 70 else []
                if t == 1:
                    items.append(('seg', i))
                if t >= 1 and al:
                    extra = extra + [al.pop(0)]
                    if t == 2:
                        extra += al
                        al = []
                for k, r in enumerate(order):
                    items.append(('mfma', r, t, sg + r, i == 0))
                    if k < len(extra):
                        items.append(extra[k])
            i += 1
    assert i == 70
    return items


def plan_sync(cfg):
    steps, stages = loader_plan(cfg)
    stage_of = {}
    for k, st in enumerate(stages):
        for b in st:
            stage_of[b] = k
    streams = []
    last_read_seg = {}
    for kh in range(2):
        items = compute_items(cfg, kh)
        segs = []
        for it in items:
            if it[0] == 'seg':
                segs.append([it[1], 0])
            elif it[0] in ('rdA', 'rdB'):
                buf = it[-1]
                segs[-1][1] = max(segs[-1][1], stage_of[buf] + 1)
                last_read_seg[buf] = max(last_read_seg.get(buf, -9), segs[-1][0])
        segs[-1][1] = len(stages)
        streams.append((items, dict(segs)))
    marks = [m for m in range(1, 70, 2)]

    def mark_after(seg):
        return min(m for m in marks if m > seg)

    need = []
    for k, st in enumerate(stages):
        n = 0
        for b in st:
            old = []
            if b[0] == 'W' and b[2] >= NWS:
                old = [('W', b[1], b[2] - NWS)]
            elif b[0] == 'X' and b[1] >= NXS:
                old = [('X', b[1] - NXS)]
            elif b[0] == 'EX':
                old = [('W', kh, i) for kh in range(2) for i in range(54, 60)]
            for o in old:
                n = max(n, mark_after(last_read_seg[o]))
        need.append(n)
    for kh in range(2):
        for seg, rd in streams[kh][1].items():
            for k in range(rd):
                assert need[k] <= max(seg, 0), (kh, seg, k, need[k])
    return steps, stages, streams, marks, need


def emit_compute(o, stubs, cfg, kh, items, segneed, marks):
    q = []
    have = 0
    flag_pending = False

    def wait_for(tags):
        idx = -1
        for n, tg in enumerate(q):
            if tg in tags:
                idx = n
        if idx >= 0:
            left = len(q) - 1 - idx
            o(f"s_waitcnt lgkmcnt({min(left, 15)})")
            del q[:len(q) - min(left, 15)]

    segs = [it[1] for it in items if it[0] == 'seg']
    nxt_need = {}
    for a, b in zip(segs, segs[1:]):
        nxt_need[a] = segneed[b]
    pend = []
    cur = None
    cnt_in_seg = 0
    for it in items:
        if it[0] == 'seg':
            cur = it[1]
            cnt_in_seg = 0
            if cur in marks:
                o(f"ds_write_b32 v{V_CONSA}, v{V_C}")
                q.append('cons')
            if segneed[cur] > have:
                have = segneed[cur]
                lab = f"L_chk{kh}_{cur + 1}"
                o.label(lab)
                o(f"s_cmp_ge_u32 s{S_F}, {have}")
                o(f"s_cbranch_scc0 L_spin{kh}_{cur + 1}")
                stubs.label(f"L_spin{kh}_{cur + 1}")
                stubs(f"ds_read_b32 v{V_F}, v{V_RDY}")
                stubs("s_waitcnt lgkmcnt(0)")
                stubs(f"v_readfirstlane_b32 s{S_F}, v{V_F}")
                bail(stubs, cfg)
                stubs(f"s_branch {lab}")
                if cfg.stamps and cur == -1:
                    o("s_memrealtime s[62:63]")
                    o("s_memtime s[72:73]")
                    o("s_waitcnt lgkmcnt(0)")
        elif it[0] == 'rdA':
            _, slot, off, buf = it
            r = AF + 4 * slot
            o(f"ds_read_b128 v[{r}:{r + 3}], v{V_XA} offset:{off}")
            q.append(('A', slot))
        elif it[0] == 'rdB':
            _, t, h, off, buf = it
            r = BF + 4 * t + 2 * h
            o(f"ds_read_b64_tr_b16 v[{r}:{r + 1}], v{V_WB} offset:{off}")
            q.append(('B', t))
        else:
            _, r, t, slot, first = it
            wait_for({('A', slot), ('B', t)})
            d = ACC + 12 * r + 4 * t
            a = AF + 4 * slot
            w = BF + 4 * t
            c = "0" if first else f"v[{d}:{d + 3}]"
            o(f"v_mfma_f32_16x16x32_bf16 v[{d}:{d + 3}], v[{w}:{w + 3}], v[{a}:{a + 3}], {c}")
            cnt_in_seg += 1
            seglen = 6 if cur == -1 else 18
            need_flag = cur in nxt_need and nxt_need[cur] > have
            if need_flag and cnt_in_seg == max(seglen - 8, 1):
                o(f"ds_read_b32 v{V_F}, v{V_RDY}")
                q.append('flag')
            if need_flag and cnt_in_seg == seglen - 1:
                wait_for({'flag'})
                o(f"v_readfirstlane_b32 s{S_F}, v{V_F}")
            if (cur + 1) in marks and cnt_in_seg == seglen - 2:
                o(f"v_mov_b32 v{V_C}, {cur + 1}")


LV_W0, LV_W1, LV_W2, LV_X, LV_RDY, LV_CA, LV_C, LV_R, LV_PF, LV_D = 1, 2, 3, 4, 5, 6, 7, 8, 12, 13
S_OFF = 50
XMASK = 0xFFFFFF | (0xFFFFFF << 26)


def emit_loader(o, stubs, cfg, steps, stages, need):
    have = 0
    for k, st in enumerate(stages):
        if need[k] > have:
            have = need[k]
            o.label(f"L_lchk{k}")
            o("s_waitcnt lgkmcnt(0)")
            o(f"v_cmp_gt_u32 vcc, {have}, v{LV_C}")
            o(f"s_cbranch_vccnz L_lspin{k}")
            stubs.label(f"L_lspin{k}")
            stubs("s_waitcnt vmcnt(0)")
            stubs(f"v_mov_b32 v{LV_R}, {k}")
            stubs(f"ds_write_b32 v{LV_RDY}, v{LV_R}")
            stubs("s_sleep 1")
            stubs(f"ds_read_b32 v{LV_C}, v{LV_CA}")
            bail(stubs, cfg)
            stubs(f"s_branch L_lchk{k}")
        n = 0
        for b in st:
            if b[0] == 'W':
                _, kh, i = b
                s, p = steps[kh][i]
                o(f"s_mov_b32 m0, {WBASE + (kh * NWS + i % NWS) * WSLOT}")
                o(f"s_mov_b32 s{S_OFF}, {(288 * p + 32 * s) * 288}")
                for j, v in enumerate((LV_W0, LV_W1, LV_W2)):
                    o(f"buffer_load_dwordx4 v{v}, s[{SRD_W}:{SRD_W + 3}], s{S_OFF} offen offset:{1024 * j} lds")
                n += 3
            elif b[0] == 'X':
                reg = b[1]
                o("s_mov_b64 exec, s[52:53]")
                for j in range(18):
                    jj = j % 5
                    if jj == 0:
                        o(f"s_mov_b32 m0, {(reg % NXS) * XREG + j * 832}")
                    o(f"s_mov_b32 s{S_OFF}, {lam(reg) * 128 + j * 6912 - jj * 832}")
                    if j == 17:
                        o("s_mov_b64 exec, 0xffff")
                    o(f"buffer_load_dwordx4 v{LV_X}, s[{SRD_X}:{SRD_X + 3}], s{S_OFF} offen offset:{jj * 832} lds")
                o("s_mov_b64 exec, -1")
                n += 18
            elif b[0] == 'PF':
                o(f"s_mov_b32 s{S_OFF}, {32 * b[1] * 288}")
                o(f"buffer_load_dword v{LV_D}, v{LV_PF}, s[{SRD_W}:{SRD_W + 3}], s{S_OFF} offen")
                n += 1
        if k == 0:
            o("s_barrier")
        if k + 1 < len(stages) and need[k + 1] > have:
            o(f"ds_read_b32 v{LV_C}, v{LV_CA}")
        assert n <= 63
        if k >= 1:
            o(f"s_waitcnt vmcnt({n})")
            lvl = k + 1 if n == 0 else k
            o(f"v_mov_b32 v{LV_R}, {lvl}")
            o(f"ds_write_b32 v{LV_RDY}, v{LV_R}")
    o("s_waitcnt lgkmcnt(0)")


def srd(o, d, lo, hi, size):
    o(f"s_mov_b32 s{d}, {lo}")
    o(f"s_mov_b32 s{d + 1}, {hi}")
    o(f"s_mov_b32 s{d + 2}, {size}")
    o(f"s_mov_b32 s{d + 3}, 0x20000")


def generate(cfg):
    steps, stages, streams, marks, need = plan_sync(cfg)
    o = Out()
    stubs = Out()
    if cfg.stamps:
        o("s_memrealtime s[60:61]")
    o("s_load_dwordx16 s[4:19], s[0:1], 0")
    o("s_mov_b32 s80, 0")
    o("s_cmp_ge_u32 s2, 256")
    o("s_cbranch_scc1 L_end")
    o(f"v_lshrrev_b32 v1, 6, v0")
    o(f"s_and_b32 s3, s2, 7")
    o(f"s_lshl_b32 s3, s3, 5")
    o(f"v_readfirstlane_b32 s{S_WAVE}, v1")
    o(f"s_lshr_b32 s{S_U}, s2, 3")
    o(f"s_add_u32 s{S_U}, s{S_U}, s3")
    o(f"s_cmp_ge_u32 s{S_U}, 252")
    o("s_cbranch_scc1 L_end")
    o(f"v_and_b32 v{V_LANE}, 63, v0")
    o(f"s_mul_hi_u32 s{S_TB}, s{S_U}, 0x55555556")
    o(f"s_mul_i32 s3, s{S_TB}, 3")
    o(f"s_sub_u32 s{S_T}, s{S_U}, s3")
    o(f"s_cmp_ge_u32 s{S_TB}, {NT}")
    o(f"s_cselect_b32 s{S_B}, 1, 0")
    o(f"s_cselect_b32 s3, {NT}, 0")
    o(f"s_sub_u32 s{S_TB}, s{S_TB}, s3")
    o(f"s_cmp_lt_u32 s{S_WAVE}, 4")
    o("s_cbranch_scc1 L_compute")
    o(f"s_cmp_gt_u32 s{S_WAVE}, 4")
    o("s_cbranch_scc1 L_helper")

    o(f"v_lshlrev_b32 v{LV_RDY}, 2, v{V_LANE}")
    o(f"v_add_u32 v{LV_RDY}, {READY}, v{LV_RDY}")
    o(f"v_mov_b32 v{LV_R}, 0")
    for j in range(5):
        o(f"ds_write_b32 v{LV_RDY}, v{LV_R} offset:{256 * j}")
    o(f"s_mul_i32 s3, s{S_T}, 96")
    for j, v in enumerate((LV_W0, LV_W1, LV_W2)):
        o(f"v_add_u32 v14, {64 * j}, v{V_LANE}")
        o(f"v_mul_u32_u24 v15, 171, v14")
        o(f"v_lshrrev_b32 v15, 10, v15")
        o(f"v_mul_u32_u24 v16, 6, v15")
        o(f"v_sub_u32 v14, v14, v16")
        o(f"v_bfe_u32 v16, v15, 2, 2")
        o(f"v_lshrrev_b32 v17, 4, v15")
        o(f"v_and_b32 v15, 3, v15")
        o(f"v_lshl_add_u32 v15, v16, 3, v15")
        o(f"v_lshl_add_u32 v15, v17, 2, v15")
        o(f"v_mul_u32_u24 v15, 288, v15")
        o(f"v_lshl_add_u32 v15, v14, 4, v15")
        o(f"v_add_u32 v15, s3, v15")
        o(f"v_subrev_u32 v{v}, {1024 * j}, v15")
    o(f"v_cmp_le_u32 vcc, 26, v{V_LANE}")
    o(f"v_subrev_u32 v14, 2, v{V_LANE}")
    o(f"s_mov_b32 s52, {XMASK & 0xFFFFFFFF}")
    o(f"s_mov_b32 s53, {XMASK >> 32}")
    o(f"v_cndmask_b32 v14, v{V_LANE}, v14, vcc")
    o(f"v_lshrrev_b32 v15, 3, v14")
    o(f"v_and_b32 v14, 7, v14")
    o(f"v_mul_u32_u24 v15, 1152, v15")
    o(f"v_lshl_add_u32 v{LV_X}, v14, 4, v15")
    o(f"v_and_b32 v14, 3, v{V_LANE}")
    o(f"v_mul_u32_u24 v14, 260, v14")
    o(f"v_add_u32 v{LV_CA}, {CONS}, v14")
    o(f"s_and_b32 s3, s{S_U}, 31")
    o(f"s_lshr_b32 s45, s3, 1")
    o(f"s_mul_i32 s45, s45, {288 * 288}")
    o(f"s_and_b32 s3, s3, 1")
    o(f"s_mul_i32 s3, s3, {36 * 128}")
    o(f"s_add_u32 s3, s3, s45")
    o(f"v_min_u32 v14, 35, v{V_LANE}")
    o(f"v_lshlrev_b32 v14, 7, v14")
    o(f"v_add_u32 v{LV_PF}, s3, v14")
    o(f"s_mul_i32 s45, s{S_B}, {XBATCH}")
    o(f"s_mul_i32 s46, s{S_TB}, {192 * 576}")
    o(f"s_add_u32 s45, s45, s46")
    o(f"s_sub_u32 s46, {XBATCH - 288}, s46")
    o("s_waitcnt lgkmcnt(0)")
    o(f"s_add_u32 s{SRD_X}, s4, s45")
    o(f"s_addc_u32 s{SRD_X + 1}, s5, 0")
    o(f"s_mov_b32 s{SRD_X + 2}, s46")
    o(f"s_mov_b32 s{SRD_X + 3}, 0x20000")
    srd(o, SRD_W, "s6", "s7", WBYTES)
    emit_loader(o, stubs, cfg, steps, stages, need)
    o("s_barrier")
    o("s_barrier")
    o(f"v_lshlrev_b32 v1, 4, v{V_LANE}")
    o(f"v_add_u32 v2, {PART}, v1")
    o("s_mov_b64 exec, 0xffffff")
    for w in range(4):
        o(f"ds_read_b128 v[{16 + 4 * w}:{19 + 4 * w}], v2 offset:{384 * w}")
    srd(o, SRD_WS, "s18", "s19", "0x10000000")
    o(f"s_mul_i32 s3, s{S_B}, 3")
    o(f"s_add_u32 s3, s3, s{S_T}")
    o(f"s_mul_i32 s3, s3, {GRP_STRIDE}")
    o(f"s_mul_i32 s45, s{S_TB}, {REC}")
    o(f"s_add_u32 s3, s3, s45")
    o("s_waitcnt lgkmcnt(2)")
    o("v_pk_add_f32 v[16:17], v[16:17], v[20:21]")
    o("v_pk_add_f32 v[18:19], v[18:19], v[22:23]")
    o("s_waitcnt lgkmcnt(0)")
    o("v_pk_add_f32 v[24:25], v[24:25], v[28:29]")
    o("v_pk_add_f32 v[26:27], v[26:27], v[30:31]")
    o("v_pk_add_f32 v[16:17], v[16:17], v[24:25]")
    o("v_pk_add_f32 v[18:19], v[18:19], v[26:27]")
    for i in range(4):
        o(f"v_min_u32 v{16 + i}, -2, v{16 + i}")
    o(f"buffer_store_dwordx4 v[16:19], v1, s[{SRD_WS}:{SRD_WS + 3}], s3 offen sc1")
    o("s_mov_b64 exec, -1")
    o("s_barrier")
    o("s_endpgm")

    o.label("L_helper")
    o(f"s_sub_u32 s45, s{S_WAVE}, 5")
    o(f"s_mul_i32 s3, s{S_B}, 3")
    o(f"s_add_u32 s46, s3, s{S_T}")
    o(f"s_mul_i32 s47, s46, {GRP_STRIDE}")
    o(f"s_lshl_b32 s46, s46, 5")
    o(f"v_and_b32 v2, 7, v{V_LANE}")
    o(f"s_mul_i32 s3, s{S_T}, 96")
    o(f"s_lshl_b32 s49, s45, 5")
    o(f"s_add_u32 s3, s3, s49")
    o(f"v_lshl_add_u32 v3, v2, 2, s3")
    o(f"v_lshlrev_b32 v1, 4, v{V_LANE}")
    o(f"v_mov_b32 v12, 0")
    o("s_waitcnt lgkmcnt(0)")
    srd(o, SRD_WS, "s18", "s19", "0x10000000")
    srd(o, SRD_DBG, "s16", "s17", 256)
    srd(o, SRD_W, "s6", "s7", WBYTES)
    o("s_cmp_eq_u32 s45, 1")
    o("s_cbranch_scc1 L_h_init")
    o("s_cmp_eq_u32 s45, 2")
    o("s_cbranch_scc1 L_h_wpf")
    if cfg.code_pf:
        o("s_getpc_b64 s[50:51]")
        o.label("L_pcref")
        o(f"s_sub_u32 s50, s50, L_pcref-{KNAME}_kernel")
        o("s_subb_u32 s51, s51, 0")
        o(f"s_and_b32 s3, s{S_U}, 7")
        o(f"v_lshl_add_u32 v4, v{V_LANE}, 3, s3")
        o(f"v_lshlrev_b32 v4, 7, v4")
        o(f"v_min_u32 v4, L_codeend-{KNAME}_kernel-4, v4")
        o("global_load_dword v5, v4, s[50:51]")
    o("s_branch L_h_common")
    o.label("L_h_wpf")
    if cfg.w_mall_pf:
        o(f"v_min_u32 v4, 39, v{V_LANE}")
        o(f"s_mul_i32 s3, s{S_U}, 40")
        o(f"v_add_lshl_u32 v4, v4, s3, 7")
        o(f"buffer_load_dword v5, v4, s[{SRD_W}:{SRD_W + 3}], 0 offen")
    o("s_branch L_h_common")
    o.label("L_h_init")
    for i in range(4):
        o(f"v_mov_b32 v{16 + i}, -1")
    o(f"s_mul_i32 s3, s{S_TB}, {REC}")
    o(f"s_add_u32 s3, s3, s47")
    o("s_mov_b64 exec, 0xffffff")
    o(f"buffer_store_dwordx4 v[16:19], v1, s[{SRD_WS}:{SRD_WS + 3}], s3 offen sc1")
    o("s_mov_b64 exec, -1")
    o.label("L_h_common")
    o("global_load_dword v6, v3, s[8:9]")
    o("global_load_dword v7, v3, s[10:11]")
    o("global_load_dword v8, v3, s[12:13]")
    o("s_barrier")
    o("s_cmp_lg_u32 s45, 1")
    o("s_cbranch_scc1 L_h_noinit")
    o("s_mov_b64 exec, 1")
    o("v_mov_b32 v5, 1")
    o("s_waitcnt vmcnt(0)")
    o(f"buffer_atomic_add v5, v12, s[{SRD_DBG}:{SRD_DBG + 3}], s46 offen sc1")
    o("s_mov_b64 exec, -1")
    o.label("L_h_noinit")
    o("s_waitcnt vmcnt(0)")
    o(f"v_mov_b32 v4, {READY}")
    o.label("L_h_wait")
    bail(o, cfg)
    o("s_sleep 16")
    o("ds_read_b32 v5, v4")
    o("s_waitcnt lgkmcnt(0)")
    o(f"v_cmp_gt_u32 vcc, {len(stages) - 1}, v5")
    o("s_cbranch_vccnz L_h_wait")
    o.label("L_h_cnt")
    bail(o, cfg)
    o(f"buffer_load_dword v5, v12, s[{SRD_DBG}:{SRD_DBG + 3}], s46 offen sc1")
    o("s_waitcnt vmcnt(0)")
    o(f"v_cmp_gt_u32 vcc, {NT}, v5")
    o("s_cbranch_vccnz L_h_cnt")
    o(f"v_lshrrev_b32 v4, 3, v{V_LANE}")
    o(f"v_mul_u32_u24 v4, {REC}, v4")
    o(f"v_lshl_add_u32 v4, v2, 4, v4")
    o(f"s_lshl_b32 s3, s45, 7")
    o(f"s_add_u32 s54, s47, s3")
    for i in range(1, 6):
        o(f"s_add_u32 s{54 + i}, s54, {8 * REC * i}")
    for i in range(4):
        o(f"v_mov_b32 v{36 + i}, 0")
    o(f"v_lshlrev_b32 v40, 16, v6")
    o(f"v_and_b32 v41, 0xffff0000, v6")
    o(f"v_lshlrev_b32 v42, 16, v7")
    o(f"v_and_b32 v43, 0xffff0000, v7")
    o(f"v_lshlrev_b32 v44, 16, v8")
    o(f"v_and_b32 v45, 0xffff0000, v8")
    o(f"s_lshl_b32 s3, s45, 6")
    o(f"s_add_u32 s3, s3, {SCSH}")
    o(f"v_lshl_add_u32 v46, v2, 3, s3")
    o("s_barrier")
    o("s_barrier")
    o.label("L_h_poll")
    bail(o, cfg)
    for i in range(5):
        o(f"buffer_load_dwordx4 v[{16 + 4 * i}:{19 + 4 * i}], v4, s[{SRD_WS}:{SRD_WS + 3}], s{54 + i} offen sc1")
    o("s_mov_b64 exec, 0xffff")
    o(f"buffer_load_dwordx4 v[36:39], v4, s[{SRD_WS}:{SRD_WS + 3}], s59 offen sc1")
    o("s_mov_b64 exec, -1")
    o("s_waitcnt vmcnt(5)")
    o("v_max3_u32 v5, v16, v17, v18")
    prev = 19
    for i in range(1, 6):
        o(f"s_waitcnt vmcnt({5 - i})")
        b0 = 16 + 4 * i
        o(f"v_max3_u32 v5, v5, v{prev}, v{b0}")
        o(f"v_max3_u32 v5, v5, v{b0 + 1}, v{b0 + 2}")
        prev = b0 + 3
    o(f"v_max_u32 v5, v5, v{prev}")
    o("v_cmp_eq_u32 vcc, -1, v5")
    o("s_cbranch_vccnz L_h_poll")
    for a, b in ((16, 20), (24, 28), (32, 36), (16, 24), (16, 32)):
        o(f"v_pk_add_f32 v[{a}:{a + 1}], v[{a}:{a + 1}], v[{b}:{b + 1}]")
        o(f"v_pk_add_f32 v[{a + 2}:{a + 3}], v[{a + 2}:{a + 3}], v[{b + 2}:{b + 3}]")
    o("s_nop 1")
    for i in range(4):
        o(f"v_add_f32_dpp v{16 + i}, v{16 + i}, v{16 + i} row_ror:8 row_mask:0xf bank_mask:0xf")
    for i in range(4):
        o(f"v_mov_b32 v{20 + i}, v{16 + i}")
    o("s_nop 1")
    for i in range(4):
        o(f"v_permlane16_swap_b32 v{16 + i}, v{20 + i}")
    for i in range(4):
        o(f"v_add_f32 v{16 + i}, v{16 + i}, v{20 + i}")
    for i in range(4):
        o(f"v_mov_b32 v{20 + i}, v{16 + i}")
    o("s_nop 1")
    for i in range(4):
        o(f"v_permlane32_swap_b32 v{16 + i}, v{20 + i}")
    import struct
    invl = struct.unpack("<I", struct.pack("<f", 1.0 / L))[0]
    eps = struct.unpack("<I", struct.pack("<f", 1e-5))[0]
    for i in range(4):
        o(f"v_add_f32 v{16 + i}, v{16 + i}, v{20 + i}")
    for i in range(4):
        o(f"v_mul_f32 v{16 + i}, {invl:#x}, v{16 + i}")
    o("v_fma_f32 v17, -v16, v16, v17")
    o("v_fma_f32 v19, -v18, v18, v19")
    o("v_max_f32 v17, 0, v17")
    o("v_max_f32 v19, 0, v19")
    o(f"v_add_f32 v17, {eps:#x}, v17")
    o(f"v_add_f32 v19, {eps:#x}, v19")
    o("v_rsq_f32 v17, v17")
    o("v_rsq_f32 v19, v19")
    o("v_add_f32 v16, v16, v40")
    o("v_add_f32 v18, v18, v41")
    o("v_sub_f32 v16, v40, v16")
    o("v_sub_f32 v18, v41, v18")
    o("v_mul_f32 v20, v42, v17")
    o("v_mul_f32 v21, v43, v19")
    o("v_fma_f32 v22, v16, v20, v44")
    o("v_fma_f32 v23, v18, v21, v45")
    o("s_mov_b64 exec, 0xff")
    o("ds_write_b64 v46, v[20:21]")
    o("ds_write_b64 v46, v[22:23] offset:192")
    o("s_waitcnt lgkmcnt(0)")
    o("s_barrier")
    o("s_endpgm")

    o.label("L_compute")
    if cfg.prio:
        o("s_setprio 2")
    o(f"v_and_b32 v12, 15, v{V_LANE}")
    o(f"v_lshrrev_b32 v13, 4, v{V_LANE}")
    o(f"s_and_b32 s45, s{S_WAVE}, 1")
    o(f"s_lshr_b32 s46, s{S_WAVE}, 1")
    o(f"v_mul_u32_u24 v{V_XA}, {XGRP}, v12")
    o(f"v_lshl_add_u32 v{V_XA}, v13, 4, v{V_XA}")
    o(f"s_mul_i32 s3, s45, {16 * XGRP}")
    o(f"v_add_u32 v{V_XA}, s3, v{V_XA}")
    o(f"s_mul_i32 s3, s46, {NWS * WSLOT}")
    o(f"s_add_u32 s3, s3, {WBASE}")
    o(f"v_mul_u32_u24 v{V_WB}, 24, v{V_LANE}")
    o(f"v_add_u32 v{V_WB}, s3, v{V_WB}")
    o(f"v_mov_b32 v{V_RDY}, {READY}")
    o(f"s_lshl_b32 s3, s{S_WAVE}, 8")
    o(f"s_add_u32 s3, s3, {CONS}")
    o(f"v_lshl_add_u32 v{V_CONSA}, v{V_LANE}, 2, s3")
    o(f"s_mul_i32 s3, s45, 96")
    o(f"s_mul_i32 s47, s46, 3")
    o(f"s_add_u32 s3, s3, s47")
    o(f"v_mul_u32_u24 v14, 6, v12")
    o(f"v_add_u32 v14, s3, v14")
    o(f"s_mul_i32 s47, s{S_TB}, 192")
    o(f"s_sub_u32 s47, {L}, s47")
    for r in range(3):
        o(f"v_add_u32 v15, {r}, v14")
        o(f"v_cmp_gt_u32 s[{54 + 2 * r}:{55 + 2 * r}], s47, v15")
    o(f"v_mul_u32_u24 v14, 288, v14")
    o(f"v_mul_u32_u24 v15, 24, v13")
    o(f"s_mul_i32 s3, s{S_T}, 96")
    o(f"v_add3_u32 v{V_OUT}, v14, v15, s3")
    o(f"s_mul_i32 s3, s45, 9216")
    o(f"s_add_u32 s3, s3, {WBASE + 6 * WSLOT}")
    o(f"v_lshl_add_u32 v{V_EX}, v{V_LANE}, 4, s3")
    o(f"s_mul_i32 s3, s{S_B}, {L}")
    o(f"s_mul_i32 s49, s{S_TB}, 192")
    o(f"s_add_u32 s3, s3, s49")
    o(f"s_mul_i32 s3, s3, 288")
    o(f"s_mul_i32 s47, s47, 288")
    o(f"s_mov_b32 s{S_F}, 0")
    o("s_waitcnt lgkmcnt(0)")
    o(f"s_add_u32 s{SRD_O}, s14, s3")
    o(f"s_addc_u32 s{SRD_O + 1}, s15, 0")
    o(f"s_mov_b32 s{SRD_O + 2}, s47")
    o(f"s_mov_b32 s{SRD_O + 3}, 0x20000")
    if cfg.stamps:
        srd(o, SRD_WS, "s18", "s19", "0x10000000")
    o("s_barrier")
    o("s_cmp_eq_u32 s46, 1")
    o("s_cbranch_scc1 L_kh1")
    Y = 152
    for kh in range(2):
        o.label(f"L_kh{kh}")
        emit_compute(o, stubs, cfg, kh, streams[kh][0], streams[kh][1], marks)
        if cfg.stamps:
            o("s_memrealtime s[64:65]")
            o("s_memtime s[74:75]")
        send = ACC + 36 * (1 - kh)
        keep = ACC + 36 * kh
        o("s_nop 7")
        for i in range(9):
            o(f"ds_write_b128 v{V_EX}, v[{send + 4 * i}:{send + 4 * i + 3}] offset:{kh * NWS * WSLOT + 1024 * i}")
        o("s_waitcnt lgkmcnt(0)")
        o("s_barrier")
        for i in range(9):
            o(f"ds_read_b128 v[{Y + 4 * i}:{Y + 4 * i + 3}], v{V_EX} offset:{(1 - kh) * NWS * WSLOT + 1024 * i}")
        for i in range(24):
            o(f"v_mov_b32 v{BF + i}, 0")
        for i in range(9):
            o(f"s_waitcnt lgkmcnt({8 - i})")
            for hh in range(2):
                a = Y + 4 * i + 2 * hh
                b = keep + 4 * i + 2 * hh
                o(f"v_pk_add_f32 v[{a}:{a + 1}], v[{a}:{a + 1}], v[{b}:{b + 1}]")
        if kh == 0:
            o("s_branch L_epi")
    o.label("L_epi")
    SM, SQ = BF, BF + 12
    for r in range(3):
        o(f"s_mov_b64 exec, s[{54 + 2 * r}:{55 + 2 * r}]")
        for c in range(0, 12, 2):
            y = Y + 12 * r + c
            o(f"v_pk_add_f32 v[{SM + c}:{SM + c + 1}], v[{SM + c}:{SM + c + 1}], v[{y}:{y + 1}]")
            o(f"v_pk_fma_f32 v[{SQ + c}:{SQ + c + 1}], v[{y}:{y + 1}], v[{y}:{y + 1}], v[{SQ + c}:{SQ + c + 1}]")
    o("s_mov_b64 exec, -1")
    o("s_nop 1")
    for base in (SM, SQ):
        for c in range(6):
            o(f"v_add_f32_dpp v{base + c}, v{base + c}, v{base + c} row_ror:8 row_mask:0xf bank_mask:0x3")
    for base in (SM, SQ):
        for c in range(6):
            o(f"v_add_f32_dpp v{base + c}, v{base + 6 + c}, v{base + 6 + c} row_ror:8 row_mask:0xf bank_mask:0xc")
    P = 120
    for si, base in enumerate((SM, SQ)):
        for c in range(3):
            o(f"v_add_f32_dpp v{P + 2 * c + si}, v{base + c}, v{base + c} row_shl:4 row_mask:0xf bank_mask:0x5")
    for si, base in enumerate((SM, SQ)):
        for c in range(3):
            o(f"v_add_f32_dpp v{P + 2 * c + si}, v{base + 3 + c}, v{base + 3 + c} row_shr:4 row_mask:0xf bank_mask:0xa")
    order = [P, P + 2, P + 4, P + 1, P + 3, P + 5]
    for perm in ("[1,0,3,2]", "[2,3,0,1]"):
        for v in order:
            o(f"v_add_f32_dpp v{v}, v{v}, v{v} quad_perm:{perm} row_mask:0xf bank_mask:0xf")
    o(f"v_lshrrev_b32 v12, 2, v{V_LANE}")
    o(f"v_mul_u32_u24 v12, 24, v12")
    o(f"s_mul_i32 s3, s{S_WAVE}, 384")
    o(f"s_add_u32 s3, s3, {PART}")
    o(f"v_add_u32 v12, s3, v12")
    o("s_mov_b32 exec_lo, 0x11111111")
    o("s_mov_b32 exec_hi, 0x11111111")
    for c in range(3):
        o(f"ds_write_b64 v12, v[{P + 2 * c}:{P + 2 * c + 1}] offset:{8 * c}")
    o("s_mov_b64 exec, -1")
    o(f"v_mul_u32_u24 v12, 48, v13")
    o(f"v_add_u32 v12, {SCSH}, v12")
    o("s_waitcnt lgkmcnt(0)")
    o("s_barrier")
    if cfg.stamps:
        o("s_memrealtime s[66:67]")
    import math
    k0 = -2.0 * math.log2(math.e) * math.sqrt(2.0 / math.pi)
    k1 = k0 * 0.044715
    f2u = lambda x: struct.unpack("<I", struct.pack("<f", x))[0]
    o(f"v_mov_b32 v14, {f2u(k0):#x}")
    o(f"v_mov_b32 v15, {f2u(k0):#x}")
    o(f"s_mov_b32 s50, {f2u(k1):#x}")
    o(f"s_mov_b32 s51, {f2u(k1):#x}")
    o("s_barrier")
    if cfg.stamps:
        o("s_memrealtime s[68:69]")
    SC, SH = 16, 28
    for i in range(3):
        o(f"ds_read_b128 v[{SC + 4 * i}:{SC + 4 * i + 3}], v12 offset:{16 * i}")
        o(f"ds_read_b128 v[{SH + 4 * i}:{SH + 4 * i + 3}], v12 offset:{192 + 16 * i}")
    o("s_waitcnt lgkmcnt(0)")
    for r in range(3):
        y0 = Y + 12 * r
        T = 40 + 12 * r
        PK = 100 + 8 * r
        pr = lambda b, c: f"v[{b + c}:{b + c + 1}]"
        for c in range(0, 12, 2):
            o(f"v_pk_fma_f32 {pr(y0, c)}, {pr(y0, c)}, {pr(SC, c)}, {pr(SH, c)}")
        for c in range(0, 12, 2):
            o(f"v_pk_mul_f32 {pr(T, c)}, {pr(y0, c)}, {pr(y0, c)}")
        for c in range(0, 12, 2):
            o(f"v_pk_fma_f32 {pr(T, c)}, {pr(T, c)}, s[50:51], v[14:15]")
        for c in range(0, 12, 2):
            o(f"v_pk_mul_f32 {pr(T, c)}, {pr(T, c)}, {pr(y0, c)}")
        for c in range(12):
            o(f"v_exp_f32 v{T + c}, v{T + c}")
        for c in range(0, 12, 2):
            o(f"v_pk_add_f32 {pr(T, c)}, {pr(T, c)}, 1.0 op_sel_hi:[1,0]")
        for c in range(12):
            o(f"v_rcp_f32 v{T + c}, v{T + c}")
        for c in range(0, 12, 2):
            o(f"v_pk_mul_f32 {pr(T, c)}, {pr(T, c)}, {pr(y0, c)}")
        for c in range(0, 12, 2):
            o(f"v_cvt_pk_bf16_f32 v{PK + c // 2}, v{T + c}, v{T + c + 1}")
        o(f"buffer_store_dwordx4 v[{PK}:{PK + 3}], v{V_OUT}, s[{SRD_O}:{SRD_O + 3}], 0 offen offset:{288 * r}")
        o(f"buffer_store_dwordx2 v[{PK + 4}:{PK + 5}], v{V_OUT}, s[{SRD_O}:{SRD_O + 3}], 0 offen offset:{288 * r + 16}")
    if cfg.stamps:
        o("s_memrealtime s[76:77]")
        o("s_waitcnt vmcnt(0)")
        o("s_memrealtime s[70:71]")
        o("s_waitcnt lgkmcnt(0)")
        o("s_sub_u32 s74, s74, s72")
        o(f"s_cmp_lg_u32 s{S_WAVE}, 0")
        o("s_cbranch_scc1 L_end")
        o(f"s_mul_i32 s3, s{S_U}, 32")
        o(f"s_add_u32 s3, s3, {STAMP_OFF}")
        o("v_mov_b32 v2, 0")
        o("s_mov_b64 exec, 1")
        for i, s in enumerate((60, 62, 64, 66, 68, 76, 70, 74)):
            o(f"v_mov_b32 v1, s{s}")
            o(f"buffer_store_dword v1, v2, s[{SRD_WS}:{SRD_WS + 3}], s3 offen offset:{4 * i}")
    o.label("L_end")
    o("s_endpgm")
    body = o.text() + "\n" + stubs.text() + "\nL_codeend:\n    s_endpgm"
    head = open("cdna_kernels/" + KNAME + ".s.ref").read().split("; Override launch")[0]
    return f"""{head}; @launch grid=(256,1,1) block=(512,1,1) lds={LDS_BYTES}
.amdgcn_target "amdgcn-amd-amdhsa--gfx950"
.text
.globl {KNAME}_kernel
.p2align 8
.type {KNAME}_kernel,@function
{KNAME}_kernel:
{body}
.section .rodata,"a"
.p2align 6
.amdhsa_kernel {KNAME}_kernel
  .amdhsa_next_free_vgpr 192
  .amdhsa_next_free_sgpr 96
  .amdhsa_accum_offset 192
  .amdhsa_group_segment_fixed_size 0
  .amdhsa_kernarg_size 64
  .amdhsa_user_sgpr_count 2
  .amdhsa_user_sgpr_kernarg_segment_ptr 1
  .amdhsa_system_sgpr_workgroup_id_x 1
  .amdhsa_float_denorm_mode_32 3
.end_amdhsa_kernel
"""


if __name__ == "__main__":
    out = sys.argv[1]
    kw = json.loads(sys.argv[2]) if len(sys.argv) > 2 else {}
    open(out, "w").write(generate(Cfg(**kw)))
```

```python
import sys, json

KNAME = "standalone__self_sup_conv_stem_hubert__speech"
L = 7985
NT = 42
XBATCH = 4608000
WBYTES = 1285632

XGRP = 416
XREG = 35 * XGRP
NXS = 4
WBASE = NXS * XREG
WSLOT = 3072
NWS = 16
FLAG = WBASE + 2 * NWS * WSLOT
READY = FLAG
CONS = FLAG + 256
PART = CONS + 1024
SCSH = PART + 1536
LDS_END = SCSH + 384
LDS_BYTES = 163840
assert LDS_END <= LDS_BYTES

REC = 384
GRP_STRIDE = 48 * REC
STAMP_OFF = 0x1000000

V_XA, V_WB, V_RDY, V_CONSA, V_F, V_C, V_T0, V_T1, V_LANE, V_OUT, V_EX = 1, 2, 3, 4, 5, 6, 7, 8, 9, 10, 11
ACC, BF, AF = 16, 88, 100
S_WAVE, S_T, S_B, S_TB, S_U = 40, 41, 42, 43, 44
S_F = 48
SRD_X, SRD_W, SRD_O, SRD_WS, SRD_DBG = 20, 24, 28, 32, 36


def lam(i):
    return (4 + 5 * i) % 9


def runs_for(kh):
    runs = []
    for s in range(9):
        if s < 5:
            cut, n = 8, 16
        else:
            cut, n = (8 if s % 2 else 7), 15
        runs.append((s, 0, cut) if kh == 0 else (s, cut, n - cut))
    return runs


class Cfg:
    stamps = False
    snake = True
    code_pf = True
    w_mall_pf = True
    w_l2_pf = True
    x_stage_ofs = 0
    prio = True
    safe = True
    enc = None
    encwg = None

    def __init__(self, **kw):
        for k, v in kw.items():
            assert hasattr(Cfg, k), k
            setattr(self, k, v)


def bail(o, cfg, limit=400000):
    if cfg.safe:
        o("s_add_u32 s80, s80, 1")
        o(f"s_cmp_gt_u32 s80, {limit}")
        o("s_cbranch_scc1 L_end")


class Out:
    def __init__(self):
        self.l = []

    def __call__(self, s):
        self.l.append("    " + s)

    def label(self, s):
        self.l.append(s + ":")

    def raw(self, s):
        self.l.append(s)

    def text(self):
        return "\n".join(self.l)


def loader_plan(cfg):
    steps = [[(s, p0 + k) for (s, p0, n) in runs_for(kh) for k in range(n)] for kh in range(2)]
    stages = []
    stages.append([('W', 0, 0), ('W', 1, 0), ('X', 0), ('X', 1)])
    stages.append([('W', 0, 1), ('W', 1, 1)])
    stages.append([('W', 0, 2), ('W', 1, 2)])
    stages.append([('W', 0, 3), ('W', 1, 3)])
    i = 4
    while i < 70:
        stages.append([('W', 0, i), ('W', 1, i), ('W', 0, i + 1), ('W', 1, i + 1)])
        i += 2
    first_step = {}
    for kh in range(2):
        for i, (s, p) in enumerate(steps[kh]):
            first_step[s] = min(first_step.get(s, 99), i) if (s in first_step) else i
    stage_of_step = {}
    for k, st in enumerate(stages):
        for b in st:
            if b[0] == 'W':
                stage_of_step[b[2]] = k
    for reg in range(2, 10):
        s = reg - 2
        k = stage_of_step[first_step[s]] + cfg.x_stage_ofs
        if s == 0:
            k = 3
        stages[k].append(('X', reg))
        if cfg.w_l2_pf and s + 1 < 9:
            stages[k].append(('PF', s + 1))
    stages.append([('EX',)])
    return steps, stages


def a_offset(s, rho):
    par, pi = rho & 1, rho >> 1
    hh = 9 * par + s
    h = hh & 1
    reg = s if h == 1 else s + 1
    assert lam(reg) == hh >> 1
    return reg, (reg % NXS) * XREG + (pi // 3) * XGRP + (pi % 3) * 128 + 64 * h


def compute_items(cfg, kh):
    runs = runs_for(kh)
    items = []

    def rdA(run, phi):
        s, p0, n = runs[run]
        reg, off = a_offset(s, p0 + phi)
        return ('rdA', phi, off, ('X', reg))

    def rdB(i, t):
        return [('rdB', t, h, (i % NWS) * WSLOT + 1536 * h + 8 * t, ('W', kh, i)) for h in range(2)]

    items.append(('seg', -1))
    for t in range(2):
        items += rdB(0, t)
    for phi in range(6):
        items.append(rdA(0, phi))
    i = 0
    for rn, (s, p0, n) in enumerate(runs):
        for sg in range(n):
            al = []
            if sg < 4:
                al += [rdA(rn, phi) for phi in (6 + 2 * sg, 7 + 2 * sg) if phi <= n + 4]
            if rn + 1 < len(runs) and sg >= n - 3:
                q = sg - (n - 3)
                al += [rdA(rn + 1, 2 * q), rdA(rn + 1, 2 * q + 1)]
            assert len(al) <= 3
            for t in range(3):
                order = list(range(6))
                if cfg.snake and t == 1:
                    order = order[::-1]
                if t == 0:
                    extra = rdB(i, 2)
                else:
                    extra = rdB(i + 1, t - 1) if i + 1 < 70 else []
                if t == 1:
                    items.append(('seg', i))
                if t >= 1 and al:
                    extra = extra + [al.pop(0)]
                    if t == 2:
                        extra += al
                        al = []
                for k, r in enumerate(order):
                    items.append(('mfma', r, t, sg + r, i == 0))
                    if k < len(extra):
                        items.append(extra[k])
            i += 1
    assert i == 70
    return items


def plan_sync(cfg):
    steps, stages = loader_plan(cfg)
    stage_of = {}
    for k, st in enumerate(stages):
        for b in st:
            stage_of[b] = k
    streams = []
    last_read_seg = {}
    for kh in range(2):
        items = compute_items(cfg, kh)
        segs = []
        for it in items:
            if it[0] == 'seg':
                segs.append([it[1], 0])
            elif it[0] in ('rdA', 'rdB'):
                buf = it[-1]
                segs[-1][1] = max(segs[-1][1], stage_of[buf] + 1)
                last_read_seg[buf] = max(last_read_seg.get(buf, -9), segs[-1][0])
        segs[-1][1] = len(stages)
        streams.append((items, dict(segs)))
    marks = [m for m in range(1, 70, 2)]

    def mark_after(seg):
        return min(m for m in marks if m > seg)

    need = []
    for k, st in enumerate(stages):
        n = 0
        for b in st:
            old = []
            if b[0] == 'W' and b[2] >= NWS:
                old = [('W', b[1], b[2] - NWS)]
            elif b[0] == 'X' and b[1] >= NXS:
                old = [('X', b[1] - NXS)]
            elif b[0] == 'EX':
                old = [('W', kh, i) for kh in range(2) for i in range(54, 60)]
            for o in old:
                n = max(n, mark_after(last_read_seg[o]))
        need.append(n)
    for kh in range(2):
        for seg, rd in streams[kh][1].items():
            for k in range(rd):
                assert need[k] <= max(seg, 0), (kh, seg, k, need[k])
    return steps, stages, streams, marks, need


def emit_compute(o, stubs, cfg, kh, items, segneed, marks):
    q = []
    have = 0
    flag_pending = False

    def wait_for(tags):
        idx = -1
        for n, tg in enumerate(q):
            if tg in tags:
                idx = n
        if idx >= 0:
            left = len(q) - 1 - idx
            o(f"s_waitcnt lgkmcnt({min(left, 15)})")
            del q[:len(q) - min(left, 15)]

    segs = [it[1] for it in items if it[0] == 'seg']
    nxt_need = {}
    for a, b in zip(segs, segs[1:]):
        nxt_need[a] = segneed[b]
    pend = []
    cur = None
    cnt_in_seg = 0
    for it in items:
        if it[0] == 'seg':
            cur = it[1]
            cnt_in_seg = 0
            if cur in marks:
                o(f"ds_write_b32 v{V_CONSA}, v{V_C}")
                q.append('cons')
            if segneed[cur] > have:
                have = segneed[cur]
                lab = f"L_chk{kh}_{cur + 1}"
                o.label(lab)
                o(f"s_cmp_ge_u32 s{S_F}, {have}")
                o(f"s_cbranch_scc0 L_spin{kh}_{cur + 1}")
                stubs.label(f"L_spin{kh}_{cur + 1}")
                stubs(f"ds_read_b32 v{V_F}, v{V_RDY}")
                stubs("s_waitcnt lgkmcnt(0)")
                stubs(f"v_readfirstlane_b32 s{S_F}, v{V_F}")
                bail(stubs, cfg)
                stubs(f"s_branch {lab}")
                if cfg.stamps and cur == -1:
                    o("s_memrealtime s[62:63]")
                    o("s_memtime s[72:73]")
                    o("s_waitcnt lgkmcnt(0)")
        elif it[0] == 'rdA':
            _, slot, off, buf = it
            r = AF + 4 * slot
            o(f"ds_read_b128 v[{r}:{r + 3}], v{V_XA} offset:{off}")
            q.append(('A', slot))
        elif it[0] == 'rdB':
            _, t, h, off, buf = it
            r = BF + 4 * t + 2 * h
            o(f"ds_read_b64_tr_b16 v[{r}:{r + 1}], v{V_WB} offset:{off}")
            q.append(('B', t))
        else:
            _, r, t, slot, first = it
            wait_for({('A', slot), ('B', t)})
            d = ACC + 12 * r + 4 * t
            a = AF + 4 * slot
            w = BF + 4 * t
            c = "0" if first else f"v[{d}:{d + 3}]"
            o(f"v_mfma_f32_16x16x32_bf16 v[{d}:{d + 3}], v[{w}:{w + 3}], v[{a}:{a + 3}], {c}")
            cnt_in_seg += 1
            seglen = 6 if cur == -1 else 18
            need_flag = cur in nxt_need and nxt_need[cur] > have
            if need_flag and cnt_in_seg == max(seglen - 8, 1):
                o(f"ds_read_b32 v{V_F}, v{V_RDY}")
                q.append('flag')
            if need_flag and cnt_in_seg == seglen - 1:
                wait_for({'flag'})
                o(f"v_readfirstlane_b32 s{S_F}, v{V_F}")
            if (cur + 1) in marks and cnt_in_seg == seglen - 2:
                o(f"v_mov_b32 v{V_C}, {cur + 1}")


LV_W0, LV_W1, LV_W2, LV_X, LV_RDY, LV_CA, LV_C, LV_R, LV_PF, LV_D = 1, 2, 3, 4, 5, 6, 7, 8, 12, 13
S_OFF = 50
XMASK = 0xFFFFFF | (0xFFFFFF << 26)


def emit_loader(o, stubs, cfg, steps, stages, need):
    have = 0
    for k, st in enumerate(stages):
        if need[k] > have:
            have = need[k]
            o.label(f"L_lchk{k}")
            o("s_waitcnt lgkmcnt(0)")
            o(f"v_cmp_gt_u32 vcc, {have}, v{LV_C}")
            o(f"s_cbranch_vccnz L_lspin{k}")
            stubs.label(f"L_lspin{k}")
            stubs("s_waitcnt vmcnt(0)")
            stubs(f"v_mov_b32 v{LV_R}, {k}")
            stubs(f"ds_write_b32 v{LV_RDY}, v{LV_R}")
            stubs("s_sleep 1")
            stubs(f"ds_read_b32 v{LV_C}, v{LV_CA}")
            bail(stubs, cfg)
            stubs(f"s_branch L_lchk{k}")
        n = 0
        for b in st:
            if b[0] == 'W':
                _, kh, i = b
                s, p = steps[kh][i]
                o(f"s_mov_b32 m0, {WBASE + (kh * NWS + i % NWS) * WSLOT}")
                o(f"s_mov_b32 s{S_OFF}, {(288 * p + 32 * s) * 288}")
                for j, v in enumerate((LV_W0, LV_W1, LV_W2)):
                    o(f"buffer_load_dwordx4 v{v}, s[{SRD_W}:{SRD_W + 3}], s{S_OFF} offen offset:{1024 * j} lds")
                n += 3
            elif b[0] == 'X':
                reg = b[1]
                o("s_mov_b64 exec, s[52:53]")
                for j in range(18):
                    jj = j % 5
                    if jj == 0:
                        o(f"s_mov_b32 m0, {(reg % NXS) * XREG + j * 832}")
                    o(f"s_mov_b32 s{S_OFF}, {lam(reg) * 128 + j * 6912 - jj * 832}")
                    if j == 17:
                        o("s_mov_b64 exec, 0xffff")
                    o(f"buffer_load_dwordx4 v{LV_X}, s[{SRD_X}:{SRD_X + 3}], s{S_OFF} offen offset:{jj * 832} lds")
                o("s_mov_b64 exec, -1")
                n += 18
            elif b[0] == 'PF':
                o(f"s_mov_b32 s{S_OFF}, {32 * b[1] * 288}")
                o(f"buffer_load_dword v{LV_D}, v{LV_PF}, s[{SRD_W}:{SRD_W + 3}], s{S_OFF} offen")
                n += 1
        if k == 0:
            o("s_barrier")
        if k + 1 < len(stages) and need[k + 1] > have:
            o(f"ds_read_b32 v{LV_C}, v{LV_CA}")
        assert n <= 63
        if k >= 1:
            o(f"s_waitcnt vmcnt({n})")
            lvl = k + 1 if n == 0 else k
            o(f"v_mov_b32 v{LV_R}, {lvl}")
            o(f"ds_write_b32 v{LV_RDY}, v{LV_R}")
    o("s_waitcnt lgkmcnt(0)")


def srd(o, d, lo, hi, size):
    o(f"s_mov_b32 s{d}, {lo}")
    o(f"s_mov_b32 s{d + 1}, {hi}")
    o(f"s_mov_b32 s{d + 2}, {size}")
    o(f"s_mov_b32 s{d + 3}, 0x20000")


def generate(cfg):
    steps, stages, streams, marks, need = plan_sync(cfg)
    o = Out()
    stubs = Out()
    if cfg.stamps:
        o("s_memrealtime s[60:61]")
    o("s_load_dwordx16 s[4:19], s[0:1], 0")
    o("s_mov_b32 s80, 0")
    o("s_cmp_ge_u32 s2, 256")
    o("s_cbranch_scc1 L_end")
    o(f"v_lshrrev_b32 v1, 6, v0")
    o(f"s_and_b32 s3, s2, 7")
    o(f"s_lshl_b32 s3, s3, 5")
    o(f"v_readfirstlane_b32 s{S_WAVE}, v1")
    o(f"s_lshr_b32 s{S_U}, s2, 3")
    o(f"s_add_u32 s{S_U}, s{S_U}, s3")
    o(f"s_cmp_ge_u32 s{S_U}, 252")
    o("s_cbranch_scc1 L_end")
    o(f"v_and_b32 v{V_LANE}, 63, v0")
    o(f"s_mul_hi_u32 s{S_TB}, s{S_U}, 0x55555556")
    o(f"s_mul_i32 s3, s{S_TB}, 3")
    o(f"s_sub_u32 s{S_T}, s{S_U}, s3")
    o(f"s_cmp_ge_u32 s{S_TB}, {NT}")
    o(f"s_cselect_b32 s{S_B}, 1, 0")
    o(f"s_cselect_b32 s3, {NT}, 0")
    o(f"s_sub_u32 s{S_TB}, s{S_TB}, s3")
    o(f"s_cmp_lt_u32 s{S_WAVE}, 4")
    o("s_cbranch_scc1 L_compute")
    o(f"s_cmp_gt_u32 s{S_WAVE}, 4")
    o("s_cbranch_scc1 L_helper")

    o(f"v_lshlrev_b32 v{LV_RDY}, 2, v{V_LANE}")
    o(f"v_add_u32 v{LV_RDY}, {READY}, v{LV_RDY}")
    o(f"v_mov_b32 v{LV_R}, 0")
    for j in range(5):
        o(f"ds_write_b32 v{LV_RDY}, v{LV_R} offset:{256 * j}")
    o(f"s_mul_i32 s3, s{S_T}, 96")
    for j, v in enumerate((LV_W0, LV_W1, LV_W2)):
        o(f"v_add_u32 v14, {64 * j}, v{V_LANE}")
        o(f"v_mul_u32_u24 v15, 171, v14")
        o(f"v_lshrrev_b32 v15, 10, v15")
        o(f"v_mul_u32_u24 v16, 6, v15")
        o(f"v_sub_u32 v14, v14, v16")
        o(f"v_bfe_u32 v16, v15, 2, 2")
        o(f"v_lshrrev_b32 v17, 4, v15")
        o(f"v_and_b32 v15, 3, v15")
        o(f"v_lshl_add_u32 v15, v16, 3, v15")
        o(f"v_lshl_add_u32 v15, v17, 2, v15")
        o(f"v_mul_u32_u24 v15, 288, v15")
        o(f"v_lshl_add_u32 v15, v14, 4, v15")
        o(f"v_add_u32 v15, s3, v15")
        o(f"v_subrev_u32 v{v}, {1024 * j}, v15")
    o(f"v_cmp_le_u32 vcc, 26, v{V_LANE}")
    o(f"v_subrev_u32 v14, 2, v{V_LANE}")
    o(f"s_mov_b32 s52, {XMASK & 0xFFFFFFFF}")
    o(f"s_mov_b32 s53, {XMASK >> 32}")
    o(f"v_cndmask_b32 v14, v{V_LANE}, v14, vcc")
    o(f"v_lshrrev_b32 v15, 3, v14")
    o(f"v_and_b32 v14, 7, v14")
    o(f"v_mul_u32_u24 v15, 1152, v15")
    o(f"v_lshl_add_u32 v{LV_X}, v14, 4, v15")
    o(f"v_and_b32 v14, 3, v{V_LANE}")
    o(f"v_mul_u32_u24 v14, 260, v14")
    o(f"v_add_u32 v{LV_CA}, {CONS}, v14")
    o(f"s_and_b32 s3, s{S_U}, 31")
    o(f"s_lshr_b32 s45, s3, 1")
    o(f"s_mul_i32 s45, s45, {288 * 288}")
    o(f"s_and_b32 s3, s3, 1")
    o(f"s_mul_i32 s3, s3, {36 * 128}")
    o(f"s_add_u32 s3, s3, s45")
    o(f"v_min_u32 v14, 35, v{V_LANE}")
    o(f"v_lshlrev_b32 v14, 7, v14")
    o(f"v_add_u32 v{LV_PF}, s3, v14")
    o(f"s_mul_i32 s45, s{S_B}, {XBATCH}")
    o(f"s_mul_i32 s46, s{S_TB}, {192 * 576}")
    o(f"s_add_u32 s45, s45, s46")
    o(f"s_sub_u32 s46, {XBATCH - 288}, s46")
    o("s_waitcnt lgkmcnt(0)")
    o(f"s_add_u32 s{SRD_X}, s4, s45")
    o(f"s_addc_u32 s{SRD_X + 1}, s5, 0")
    o(f"s_mov_b32 s{SRD_X + 2}, s46")
    o(f"s_mov_b32 s{SRD_X + 3}, 0x20000")
    srd(o, SRD_W, "s6", "s7", WBYTES)
    emit_loader(o, stubs, cfg, steps, stages, need)
    o("s_barrier")
    o("s_barrier")
    o(f"v_lshlrev_b32 v1, 4, v{V_LANE}")
    o(f"v_add_u32 v2, {PART}, v1")
    o("s_mov_b64 exec, 0xffffff")
    for w in range(4):
        o(f"ds_read_b128 v[{16 + 4 * w}:{19 + 4 * w}], v2 offset:{384 * w}")
    srd(o, SRD_WS, "s18", "s19", "0x10000000")
    o(f"s_mul_i32 s3, s{S_B}, 3")
    o(f"s_add_u32 s3, s3, s{S_T}")
    o(f"s_mul_i32 s3, s3, {GRP_STRIDE}")
    o(f"s_mul_i32 s45, s{S_TB}, {REC}")
    o(f"s_add_u32 s3, s3, s45")
    o("s_waitcnt lgkmcnt(2)")
    o("v_pk_add_f32 v[16:17], v[16:17], v[20:21]")
    o("v_pk_add_f32 v[18:19], v[18:19], v[22:23]")
    o("s_waitcnt lgkmcnt(0)")
    o("v_pk_add_f32 v[24:25], v[24:25], v[28:29]")
    o("v_pk_add_f32 v[26:27], v[26:27], v[30:31]")
    o("v_pk_add_f32 v[16:17], v[16:17], v[24:25]")
    o("v_pk_add_f32 v[18:19], v[18:19], v[26:27]")
    for i in range(4):
        o(f"v_min_u32 v{16 + i}, -2, v{16 + i}")
    o(f"buffer_store_dwordx4 v[16:19], v1, s[{SRD_WS}:{SRD_WS + 3}], s3 offen sc1")
    o("s_mov_b64 exec, -1")
    o("s_barrier")
    o("s_endpgm")

    o.label("L_helper")
    o(f"s_sub_u32 s45, s{S_WAVE}, 5")
    o(f"s_mul_i32 s3, s{S_B}, 3")
    o(f"s_add_u32 s46, s3, s{S_T}")
    o(f"s_mul_i32 s47, s46, {GRP_STRIDE}")
    o(f"s_lshl_b32 s46, s46, 5")
    o(f"v_and_b32 v2, 7, v{V_LANE}")
    o(f"s_mul_i32 s3, s{S_T}, 96")
    o(f"s_lshl_b32 s49, s45, 5")
    o(f"s_add_u32 s3, s3, s49")
    o(f"v_lshl_add_u32 v3, v2, 2, s3")
    o(f"v_lshlrev_b32 v1, 4, v{V_LANE}")
    o(f"v_mov_b32 v12, 0")
    o("s_waitcnt lgkmcnt(0)")
    srd(o, SRD_WS, "s18", "s19", "0x10000000")
    srd(o, SRD_DBG, "s16", "s17", 256)
    srd(o, SRD_W, "s6", "s7", WBYTES)
    o("s_cmp_eq_u32 s45, 1")
    o("s_cbranch_scc1 L_h_init")
    o("s_cmp_eq_u32 s45, 2")
    o("s_cbranch_scc1 L_h_wpf")
    if cfg.code_pf:
        o("s_getpc_b64 s[50:51]")
        o.label("L_pcref")
        o(f"s_sub_u32 s50, s50, L_pcref-{KNAME}_kernel")
        o("s_subb_u32 s51, s51, 0")
        o(f"s_and_b32 s3, s{S_U}, 7")
        o(f"v_lshl_add_u32 v4, v{V_LANE}, 3, s3")
        o(f"v_lshlrev_b32 v4, 7, v4")
        o(f"v_min_u32 v4, L_codeend-{KNAME}_kernel-4, v4")
        o("global_load_dword v5, v4, s[50:51]")
    o("s_branch L_h_common")
    o.label("L_h_wpf")
    if cfg.w_mall_pf:
        o(f"v_min_u32 v4, 39, v{V_LANE}")
        o(f"s_mul_i32 s3, s{S_U}, 40")
        o(f"v_add_lshl_u32 v4, v4, s3, 7")
        o(f"buffer_load_dword v5, v4, s[{SRD_W}:{SRD_W + 3}], 0 offen")
    o("s_branch L_h_common")
    o.label("L_h_init")
    for i in range(4):
        o(f"v_mov_b32 v{16 + i}, -1")
    o(f"s_mul_i32 s3, s{S_TB}, {REC}")
    o(f"s_add_u32 s3, s3, s47")
    o("s_mov_b64 exec, 0xffffff")
    o(f"buffer_store_dwordx4 v[16:19], v1, s[{SRD_WS}:{SRD_WS + 3}], s3 offen sc1")
    o("s_mov_b64 exec, -1")
    o.label("L_h_common")
    o("global_load_dword v6, v3, s[8:9]")
    o("global_load_dword v7, v3, s[10:11]")
    o("global_load_dword v8, v3, s[12:13]")
    o("s_barrier")
    o("s_cmp_lg_u32 s45, 1")
    o("s_cbranch_scc1 L_h_noinit")
    o("s_mov_b64 exec, 1")
    o("v_mov_b32 v5, 1")
    o("s_waitcnt vmcnt(0)")
    o(f"buffer_atomic_add v5, v12, s[{SRD_DBG}:{SRD_DBG + 3}], s46 offen sc1")
    o("s_mov_b64 exec, -1")
    o.label("L_h_noinit")
    o("s_waitcnt vmcnt(0)")
    o(f"v_mov_b32 v4, {READY}")
    o.label("L_h_wait")
    bail(o, cfg)
    o("s_sleep 16")
    o("ds_read_b32 v5, v4")
    o("s_waitcnt lgkmcnt(0)")
    o(f"v_cmp_gt_u32 vcc, {len(stages) - 1}, v5")
    o("s_cbranch_vccnz L_h_wait")
    o.label("L_h_cnt")
    bail(o, cfg)
    o(f"buffer_load_dword v5, v12, s[{SRD_DBG}:{SRD_DBG + 3}], s46 offen sc1")
    o("s_waitcnt vmcnt(0)")
    o(f"v_cmp_gt_u32 vcc, {NT}, v5")
    o("s_cbranch_vccnz L_h_cnt")
    o(f"v_lshrrev_b32 v4, 3, v{V_LANE}")
    o(f"v_mul_u32_u24 v4, {REC}, v4")
    o(f"v_lshl_add_u32 v4, v2, 4, v4")
    o(f"s_lshl_b32 s3, s45, 7")
    o(f"s_add_u32 s54, s47, s3")
    for i in range(1, 6):
        o(f"s_add_u32 s{54 + i}, s54, {8 * REC * i}")
    for i in range(4):
        o(f"v_mov_b32 v{36 + i}, 0")
    o(f"v_lshlrev_b32 v40, 16, v6")
    o(f"v_and_b32 v41, 0xffff0000, v6")
    o(f"v_lshlrev_b32 v42, 16, v7")
    o(f"v_and_b32 v43, 0xffff0000, v7")
    o(f"v_lshlrev_b32 v44, 16, v8")
    o(f"v_and_b32 v45, 0xffff0000, v8")
    o(f"s_lshl_b32 s3, s45, 6")
    o(f"s_add_u32 s3, s3, {SCSH}")
    o(f"v_lshl_add_u32 v46, v2, 3, s3")
    o("s_barrier")
    o("s_barrier")
    o.label("L_h_poll")
    bail(o, cfg)
    for i in range(5):
        o(f"buffer_load_dwordx4 v[{16 + 4 * i}:{19 + 4 * i}], v4, s[{SRD_WS}:{SRD_WS + 3}], s{54 + i} offen sc1")
    o("s_mov_b64 exec, 0xffff")
    o(f"buffer_load_dwordx4 v[36:39], v4, s[{SRD_WS}:{SRD_WS + 3}], s59 offen sc1")
    o("s_mov_b64 exec, -1")
    o("s_waitcnt vmcnt(5)")
    o("v_max3_u32 v5, v16, v17, v18")
    prev = 19
    for i in range(1, 6):
        o(f"s_waitcnt vmcnt({5 - i})")
        b0 = 16 + 4 * i
        o(f"v_max3_u32 v5, v5, v{prev}, v{b0}")
        o(f"v_max3_u32 v5, v5, v{b0 + 1}, v{b0 + 2}")
        prev = b0 + 3
    o(f"v_max_u32 v5, v5, v{prev}")
    o("v_cmp_eq_u32 vcc, -1, v5")
    o("s_cbranch_vccnz L_h_poll")
    for a, b in ((16, 20), (24, 28), (32, 36), (16, 24), (16, 32)):
        o(f"v_pk_add_f32 v[{a}:{a + 1}], v[{a}:{a + 1}], v[{b}:{b + 1}]")
        o(f"v_pk_add_f32 v[{a + 2}:{a + 3}], v[{a + 2}:{a + 3}], v[{b + 2}:{b + 3}]")
    o("s_nop 1")
    for i in range(4):
        o(f"v_add_f32_dpp v{16 + i}, v{16 + i}, v{16 + i} row_ror:8 row_mask:0xf bank_mask:0xf")
    for i in range(4):
        o(f"v_mov_b32 v{20 + i}, v{16 + i}")
    o("s_nop 1")
    for i in range(4):
        o(f"v_permlane16_swap_b32 v{16 + i}, v{20 + i}")
    for i in range(4):
        o(f"v_add_f32 v{16 + i}, v{16 + i}, v{20 + i}")
    for i in range(4):
        o(f"v_mov_b32 v{20 + i}, v{16 + i}")
    o("s_nop 1")
    for i in range(4):
        o(f"v_permlane32_swap_b32 v{16 + i}, v{20 + i}")
    import struct
    invl = struct.unpack("<I", struct.pack("<f", 1.0 / L))[0]
    eps = struct.unpack("<I", struct.pack("<f", 1e-5))[0]
    for i in range(4):
        o(f"v_add_f32 v{16 + i}, v{16 + i}, v{20 + i}")
    for i in range(4):
        o(f"v_mul_f32 v{16 + i}, {invl:#x}, v{16 + i}")
    o("v_fma_f32 v17, -v16, v16, v17")
    o("v_fma_f32 v19, -v18, v18, v19")
    o("v_max_f32 v17, 0, v17")
    o("v_max_f32 v19, 0, v19")
    o(f"v_add_f32 v17, {eps:#x}, v17")
    o(f"v_add_f32 v19, {eps:#x}, v19")
    o("v_rsq_f32 v17, v17")
    o("v_rsq_f32 v19, v19")
    o("v_add_f32 v16, v16, v40")
    o("v_add_f32 v18, v18, v41")
    o("v_sub_f32 v16, v40, v16")
    o("v_sub_f32 v18, v41, v18")
    o("v_mul_f32 v20, v42, v17")
    o("v_mul_f32 v21, v43, v19")
    o("v_fma_f32 v22, v16, v20, v44")
    o("v_fma_f32 v23, v18, v21, v45")
    o("s_mov_b64 exec, 0xff")
    o("ds_write_b64 v46, v[20:21]")
    o("ds_write_b64 v46, v[22:23] offset:192")
    o("s_waitcnt lgkmcnt(0)")
    o("s_barrier")
    o("s_endpgm")

    o.label("L_compute")
    if cfg.prio:
        o("s_setprio 2")
    o(f"v_and_b32 v12, 15, v{V_LANE}")
    o(f"v_lshrrev_b32 v13, 4, v{V_LANE}")
    o(f"s_and_b32 s45, s{S_WAVE}, 1")
    o(f"s_lshr_b32 s46, s{S_WAVE}, 1")
    o(f"v_mul_u32_u24 v{V_XA}, {XGRP}, v12")
    o(f"v_lshl_add_u32 v{V_XA}, v13, 4, v{V_XA}")
    o(f"s_mul_i32 s3, s45, {16 * XGRP}")
    o(f"v_add_u32 v{V_XA}, s3, v{V_XA}")
    o(f"s_mul_i32 s3, s46, {NWS * WSLOT}")
    o(f"s_add_u32 s3, s3, {WBASE}")
    o(f"v_mul_u32_u24 v{V_WB}, 24, v{V_LANE}")
    o(f"v_add_u32 v{V_WB}, s3, v{V_WB}")
    o(f"v_mov_b32 v{V_RDY}, {READY}")
    o(f"s_lshl_b32 s3, s{S_WAVE}, 8")
    o(f"s_add_u32 s3, s3, {CONS}")
    o(f"v_lshl_add_u32 v{V_CONSA}, v{V_LANE}, 2, s3")
    o(f"s_mul_i32 s3, s45, 96")
    o(f"s_mul_i32 s47, s46, 3")
    o(f"s_add_u32 s3, s3, s47")
    o(f"v_mul_u32_u24 v14, 6, v12")
    o(f"v_add_u32 v14, s3, v14")
    o(f"s_mul_i32 s47, s{S_TB}, 192")
    o(f"s_sub_u32 s47, {L}, s47")
    for r in range(3):
        o(f"v_add_u32 v15, {r}, v14")
        o(f"v_cmp_gt_u32 s[{54 + 2 * r}:{55 + 2 * r}], s47, v15")
    o(f"v_mul_u32_u24 v14, 288, v14")
    o(f"v_mul_u32_u24 v15, 24, v13")
    o(f"s_mul_i32 s3, s{S_T}, 96")
    o(f"v_add3_u32 v{V_OUT}, v14, v15, s3")
    o(f"s_mul_i32 s3, s45, 9216")
    o(f"s_add_u32 s3, s3, {WBASE + 6 * WSLOT}")
    o(f"v_lshl_add_u32 v{V_EX}, v{V_LANE}, 4, s3")
    o(f"s_mul_i32 s3, s{S_B}, {L}")
    o(f"s_mul_i32 s49, s{S_TB}, 192")
    o(f"s_add_u32 s3, s3, s49")
    o(f"s_mul_i32 s3, s3, 288")
    o(f"s_mul_i32 s47, s47, 288")
    o(f"s_mov_b32 s{S_F}, 0")
    o("s_waitcnt lgkmcnt(0)")
    o(f"s_add_u32 s{SRD_O}, s14, s3")
    o(f"s_addc_u32 s{SRD_O + 1}, s15, 0")
    o(f"s_mov_b32 s{SRD_O + 2}, s47")
    o(f"s_mov_b32 s{SRD_O + 3}, 0x20000")
    if cfg.stamps:
        srd(o, SRD_WS, "s18", "s19", "0x10000000")
    o("s_barrier")
    o("s_cmp_eq_u32 s46, 1")
    o("s_cbranch_scc1 L_kh1")
    Y = 152
    for kh in range(2):
        o.label(f"L_kh{kh}")
        emit_compute(o, stubs, cfg, kh, streams[kh][0], streams[kh][1], marks)
        if cfg.stamps:
            o("s_memrealtime s[64:65]")
            o("s_memtime s[74:75]")
        send = ACC + 36 * (1 - kh)
        keep = ACC + 36 * kh
        o("s_nop 7")
        for i in range(9):
            o(f"ds_write_b128 v{V_EX}, v[{send + 4 * i}:{send + 4 * i + 3}] offset:{kh * NWS * WSLOT + 1024 * i}")
        o("s_waitcnt lgkmcnt(0)")
        o("s_barrier")
        for i in range(9):
            o(f"ds_read_b128 v[{Y + 4 * i}:{Y + 4 * i + 3}], v{V_EX} offset:{(1 - kh) * NWS * WSLOT + 1024 * i}")
        for i in range(24):
            o(f"v_mov_b32 v{BF + i}, 0")
        for i in range(9):
            o(f"s_waitcnt lgkmcnt({8 - i})")
            for hh in range(2):
                a = Y + 4 * i + 2 * hh
                b = keep + 4 * i + 2 * hh
                o(f"v_pk_add_f32 v[{a}:{a + 1}], v[{a}:{a + 1}], v[{b}:{b + 1}]")
        if kh == 0:
            o("s_branch L_epi")
    o.label("L_epi")
    SM, SQ = BF, BF + 12
    for r in range(3):
        o(f"s_mov_b64 exec, s[{54 + 2 * r}:{55 + 2 * r}]")
        for c in range(0, 12, 2):
            y = Y + 12 * r + c
            o(f"v_pk_add_f32 v[{SM + c}:{SM + c + 1}], v[{SM + c}:{SM + c + 1}], v[{y}:{y + 1}]")
            o(f"v_pk_fma_f32 v[{SQ + c}:{SQ + c + 1}], v[{y}:{y + 1}], v[{y}:{y + 1}], v[{SQ + c}:{SQ + c + 1}]")
    o("s_mov_b64 exec, -1")
    o("s_nop 1")
    for base in (SM, SQ):
        for c in range(6):
            o(f"v_add_f32_dpp v{base + c}, v{base + c}, v{base + c} row_ror:8 row_mask:0xf bank_mask:0x3")
    for base in (SM, SQ):
        for c in range(6):
            o(f"v_add_f32_dpp v{base + c}, v{base + 6 + c}, v{base + 6 + c} row_ror:8 row_mask:0xf bank_mask:0xc")
    P = 120
    for si, base in enumerate((SM, SQ)):
        for c in range(3):
            o(f"v_add_f32_dpp v{P + 2 * c + si}, v{base + c}, v{base + c} row_shl:4 row_mask:0xf bank_mask:0x5")
    for si, base in enumerate((SM, SQ)):
        for c in range(3):
            o(f"v_add_f32_dpp v{P + 2 * c + si}, v{base + 3 + c}, v{base + 3 + c} row_shr:4 row_mask:0xf bank_mask:0xa")
    order = [P, P + 2, P + 4, P + 1, P + 3, P + 5]
    for perm in ("[1,0,3,2]", "[2,3,0,1]"):
        for v in order:
            o(f"v_add_f32_dpp v{v}, v{v}, v{v} quad_perm:{perm} row_mask:0xf bank_mask:0xf")
    o(f"v_lshrrev_b32 v12, 2, v{V_LANE}")
    o(f"v_mul_u32_u24 v12, 24, v12")
    o(f"s_mul_i32 s3, s{S_WAVE}, 384")
    o(f"s_add_u32 s3, s3, {PART}")
    o(f"v_add_u32 v12, s3, v12")
    o("s_mov_b32 exec_lo, 0x11111111")
    o("s_mov_b32 exec_hi, 0x11111111")
    for c in range(3):
        o(f"ds_write_b64 v12, v[{P + 2 * c}:{P + 2 * c + 1}] offset:{8 * c}")
    o("s_mov_b64 exec, -1")
    o(f"v_mul_u32_u24 v12, 48, v13")
    o(f"v_add_u32 v12, {SCSH}, v12")
    o("s_waitcnt lgkmcnt(0)")
    o("s_barrier")
    if cfg.stamps:
        o("s_memrealtime s[66:67]")
    import math
    k0 = -2.0 * math.log2(math.e) * math.sqrt(2.0 / math.pi)
    k1 = k0 * 0.044715
    f2u = lambda x: struct.unpack("<I", struct.pack("<f", x))[0]
    o(f"v_mov_b32 v14, {f2u(k0):#x}")
    o(f"v_mov_b32 v15, {f2u(k0):#x}")
    o(f"s_mov_b32 s50, {f2u(k1):#x}")
    o(f"s_mov_b32 s51, {f2u(k1):#x}")
    o("s_barrier")
    if cfg.stamps:
        o("s_memrealtime s[68:69]")
    SC, SH = 16, 28
    for i in range(3):
        o(f"ds_read_b128 v[{SC + 4 * i}:{SC + 4 * i + 3}], v12 offset:{16 * i}")
        o(f"ds_read_b128 v[{SH + 4 * i}:{SH + 4 * i + 3}], v12 offset:{192 + 16 * i}")
    o("s_waitcnt lgkmcnt(0)")
    for r in range(3):
        y0 = Y + 12 * r
        T = 40 + 12 * r
        PK = 100 + 8 * r
        pr = lambda b, c: f"v[{b + c}:{b + c + 1}]"
        for c in range(0, 12, 2):
            o(f"v_pk_fma_f32 {pr(y0, c)}, {pr(y0, c)}, {pr(SC, c)}, {pr(SH, c)}")
        for c in range(0, 12, 2):
            o(f"v_pk_mul_f32 {pr(T, c)}, {pr(y0, c)}, {pr(y0, c)}")
        for c in range(0, 12, 2):
            o(f"v_pk_fma_f32 {pr(T, c)}, {pr(T, c)}, s[50:51], v[14:15]")
        for c in range(0, 12, 2):
            o(f"v_pk_mul_f32 {pr(T, c)}, {pr(T, c)}, {pr(y0, c)}")
        for c in range(12):
            o(f"v_exp_f32 v{T + c}, v{T + c}")
        for c in range(0, 12, 2):
            o(f"v_pk_add_f32 {pr(T, c)}, {pr(T, c)}, 1.0 op_sel_hi:[1,0]")
        for c in range(12):
            o(f"v_rcp_f32 v{T + c}, v{T + c}")
        for c in range(0, 12, 2):
            o(f"v_pk_mul_f32 {pr(T, c)}, {pr(T, c)}, {pr(y0, c)}")
        for c in range(0, 12, 2):
            o(f"v_cvt_pk_bf16_f32 v{PK + c // 2}, v{T + c}, v{T + c + 1}")
        o(f"buffer_store_dwordx4 v[{PK}:{PK + 3}], v{V_OUT}, s[{SRD_O}:{SRD_O + 3}], 0 offen offset:{288 * r}")
        o(f"buffer_store_dwordx2 v[{PK + 4}:{PK + 5}], v{V_OUT}, s[{SRD_O}:{SRD_O + 3}], 0 offen offset:{288 * r + 16}")
    if cfg.stamps:
        o("s_memrealtime s[76:77]")
        o("s_waitcnt vmcnt(0)")
        o("s_memrealtime s[70:71]")
        o("s_waitcnt lgkmcnt(0)")
        o("s_sub_u32 s74, s74, s72")
        o(f"s_cmp_lg_u32 s{S_WAVE}, 0")
        o("s_cbranch_scc1 L_end")
        if cfg.enc is not None:
            if cfg.encwg is not None:
                o(f"s_cmp_lg_u32 s{S_U}, {cfg.encwg}")
                o("s_cbranch_scc1 L_end")
            sr = (60, 62, 64, 66, 68, 76, 70)[cfg.enc]
            o(f"s_sub_u32 s3, s{sr}, s60")
            o("s_mul_i32 s3, s3, 10")
            o("s_add_u32 s3, s3, 6000")
            o("s_add_u32 s3, s3, s60")
            o.label("L_enc")
            o("s_memrealtime s[78:79]")
            o("s_waitcnt lgkmcnt(0)")
            o("s_sub_u32 s78, s78, s3")
            o("s_cmp_lt_i32 s78, 0")
            o("s_cbranch_scc1 L_enc")
        o(f"s_mul_i32 s3, s{S_U}, 32")
        o(f"s_add_u32 s3, s3, {STAMP_OFF}")
        o("v_mov_b32 v2, 0")
        o("s_mov_b64 exec, 1")
        for i, s in enumerate((60, 62, 64, 66, 68, 76, 70, 74)):
            o(f"v_mov_b32 v1, s{s}")
            o(f"buffer_store_dword v1, v2, s[{SRD_WS}:{SRD_WS + 3}], s3 offen offset:{4 * i}")
    o.label("L_end")
    o("s_endpgm")
    body = o.text() + "\n" + stubs.text() + "\nL_codeend:\n    s_endpgm"
    head = open("cdna_kernels/" + KNAME + ".s.ref").read().split("; Override launch")[0]
    return f"""{head}; @launch grid=(256,1,1) block=(512,1,1) lds={LDS_BYTES}
.amdgcn_target "amdgcn-amd-amdhsa--gfx950"
.text
.globl {KNAME}_kernel
.p2align 8
.type {KNAME}_kernel,@function
{KNAME}_kernel:
{body}
.section .rodata,"a"
.p2align 6
.amdhsa_kernel {KNAME}_kernel
  .amdhsa_next_free_vgpr 192
  .amdhsa_next_free_sgpr 96
  .amdhsa_accum_offset 192
  .amdhsa_group_segment_fixed_size 0
  .amdhsa_kernarg_size 64
  .amdhsa_user_sgpr_count 2
  .amdhsa_user_sgpr_kernarg_segment_ptr 1
  .amdhsa_system_sgpr_workgroup_id_x 1
  .amdhsa_float_denorm_mode_32 3
.end_amdhsa_kernel
"""


if __name__ == "__main__":
    out = sys.argv[1]
    kw = json.loads(sys.argv[2]) if len(sys.argv) > 2 else {}
    open(out, "w").write(generate(Cfg(**kw)))
```

```python
import sys, json

KNAME = "standalone__self_sup_conv_stem_hubert__speech"
L = 7985
NT = 42
XBATCH = 4608000
WBYTES = 1285632

XGRP = 416
XREG = 35 * XGRP
NXS = 4
WBASE = NXS * XREG
WSLOT = 3072
NWS = 16
FLAG = WBASE + 2 * NWS * WSLOT
READY = FLAG
CONS = FLAG + 256
PART = CONS + 1024
SCSH = PART + 1536
LDS_END = SCSH + 384
LDS_BYTES = 163840
assert LDS_END <= LDS_BYTES

REC = 384
GRP_STRIDE = 48 * REC
STAMP_OFF = 0x1000000

V_XA, V_WB, V_RDY, V_CONSA, V_F, V_C, V_T0, V_T1, V_LANE, V_OUT, V_EX = 1, 2, 3, 4, 5, 6, 7, 8, 9, 10, 11
ACC, BF, AF = 16, 88, 100
S_WAVE, S_T, S_B, S_TB, S_U = 40, 41, 42, 43, 44
S_F = 48
SRD_X, SRD_W, SRD_O, SRD_WS, SRD_DBG = 20, 24, 28, 32, 36


def lam(i):
    return (4 + 5 * i) % 9


def runs_for(kh):
    runs = []
    for s in range(9):
        if s < 5:
            cut, n = 8, 16
        else:
            cut, n = (8 if s % 2 else 7), 15
        runs.append((s, 0, cut) if kh == 0 else (s, cut, n - cut))
    return runs


class Cfg:
    stamps = False
    snake = True
    code_pf = True
    w_mall_pf = True
    w_l2_pf = True
    x_stage_ofs = 0
    prio = True
    safe = True
    enc = None
    encwg = None
    probe = None

    def __init__(self, **kw):
        for k, v in kw.items():
            assert hasattr(Cfg, k), k
            setattr(self, k, v)


def bail(o, cfg, limit=400000):
    if cfg.safe:
        o("s_add_u32 s80, s80, 1")
        o(f"s_cmp_gt_u32 s80, {limit}")
        o("s_cbranch_scc1 L_end")


class Out:
    def __init__(self):
        self.l = []

    def __call__(self, s):
        self.l.append("    " + s)

    def label(self, s):
        self.l.append(s + ":")

    def raw(self, s):
        self.l.append(s)

    def text(self):
        return "\n".join(self.l)


def loader_plan(cfg):
    steps = [[(s, p0 + k) for (s, p0, n) in runs_for(kh) for k in range(n)] for kh in range(2)]
    stages = []
    stages.append([('W', 0, 0), ('W', 1, 0), ('X', 0), ('X', 1)])
    stages.append([('W', 0, 1), ('W', 1, 1)])
    stages.append([('W', 0, 2), ('W', 1, 2)])
    stages.append([('W', 0, 3), ('W', 1, 3)])
    i = 4
    while i < 70:
        stages.append([('W', 0, i), ('W', 1, i), ('W', 0, i + 1), ('W', 1, i + 1)])
        i += 2
    first_step = {}
    for kh in range(2):
        for i, (s, p) in enumerate(steps[kh]):
            first_step[s] = min(first_step.get(s, 99), i) if (s in first_step) else i
    stage_of_step = {}
    for k, st in enumerate(stages):
        for b in st:
            if b[0] == 'W':
                stage_of_step[b[2]] = k
    for reg in range(2, 10):
        s = reg - 2
        k = stage_of_step[first_step[s]] + cfg.x_stage_ofs
        if s == 0:
            k = 3
        stages[k].append(('X', reg))
        if cfg.w_l2_pf and s + 1 < 9:
            stages[k].append(('PF', s + 1))
    stages.append([('EX',)])
    return steps, stages


def a_offset(s, rho):
    par, pi = rho & 1, rho >> 1
    hh = 9 * par + s
    h = hh & 1
    reg = s if h == 1 else s + 1
    assert lam(reg) == hh >> 1
    return reg, (reg % NXS) * XREG + (pi // 3) * XGRP + (pi % 3) * 128 + 64 * h


def compute_items(cfg, kh):
    runs = runs_for(kh)
    items = []

    def rdA(run, phi):
        s, p0, n = runs[run]
        reg, off = a_offset(s, p0 + phi)
        return ('rdA', phi, off, ('X', reg))

    def rdB(i, t):
        return [('rdB', t, h, (i % NWS) * WSLOT + 1536 * h + 8 * t, ('W', kh, i)) for h in range(2)]

    items.append(('seg', -1))
    for t in range(2):
        items += rdB(0, t)
    for phi in range(6):
        items.append(rdA(0, phi))
    i = 0
    for rn, (s, p0, n) in enumerate(runs):
        for sg in range(n):
            al = []
            if sg < 4:
                al += [rdA(rn, phi) for phi in (6 + 2 * sg, 7 + 2 * sg) if phi <= n + 4]
            if rn + 1 < len(runs) and sg >= n - 3:
                q = sg - (n - 3)
                al += [rdA(rn + 1, 2 * q), rdA(rn + 1, 2 * q + 1)]
            assert len(al) <= 3
            for t in range(3):
                order = list(range(6))
                if cfg.snake and t == 1:
                    order = order[::-1]
                if t == 0:
                    extra = rdB(i, 2)
                else:
                    extra = rdB(i + 1, t - 1) if i + 1 < 70 else []
                if t == 1:
                    items.append(('seg', i))
                if t >= 1 and al:
                    extra = extra + [al.pop(0)]
                    if t == 2:
                        extra += al
                        al = []
                for k, r in enumerate(order):
                    items.append(('mfma', r, t, sg + r, i == 0))
                    if k < len(extra):
                        items.append(extra[k])
            i += 1
    assert i == 70
    return items


def plan_sync(cfg):
    steps, stages = loader_plan(cfg)
    stage_of = {}
    for k, st in enumerate(stages):
        for b in st:
            stage_of[b] = k
    streams = []
    last_read_seg = {}
    for kh in range(2):
        items = compute_items(cfg, kh)
        segs = []
        for it in items:
            if it[0] == 'seg':
                segs.append([it[1], 0])
            elif it[0] in ('rdA', 'rdB'):
                buf = it[-1]
                segs[-1][1] = max(segs[-1][1], stage_of[buf] + 1)
                last_read_seg[buf] = max(last_read_seg.get(buf, -9), segs[-1][0])
        segs[-1][1] = len(stages)
        streams.append((items, dict(segs)))
    marks = [m for m in range(1, 70, 2)]

    def mark_after(seg):
        return min(m for m in marks if m > seg)

    need = []
    for k, st in enumerate(stages):
        n = 0
        for b in st:
            old = []
            if b[0] == 'W' and b[2] >= NWS:
                old = [('W', b[1], b[2] - NWS)]
            elif b[0] == 'X' and b[1] >= NXS:
                old = [('X', b[1] - NXS)]
            elif b[0] == 'EX':
                old = [('W', kh, i) for kh in range(2) for i in range(54, 60)]
            for o in old:
                n = max(n, mark_after(last_read_seg[o]))
        need.append(n)
    for kh in range(2):
        for seg, rd in streams[kh][1].items():
            for k in range(rd):
                assert need[k] <= max(seg, 0), (kh, seg, k, need[k])
    return steps, stages, streams, marks, need


def emit_compute(o, stubs, cfg, kh, items, segneed, marks):
    q = []
    have = 0
    flag_pending = False

    def wait_for(tags):
        idx = -1
        for n, tg in enumerate(q):
            if tg in tags:
                idx = n
        if idx >= 0:
            left = len(q) - 1 - idx
            o(f"s_waitcnt lgkmcnt({min(left, 15)})")
            del q[:len(q) - min(left, 15)]

    segs = [it[1] for it in items if it[0] == 'seg']
    nxt_need = {}
    for a, b in zip(segs, segs[1:]):
        nxt_need[a] = segneed[b]
    pend = []
    cur = None
    cnt_in_seg = 0
    for it in items:
        if it[0] == 'seg':
            cur = it[1]
            cnt_in_seg = 0
            if cur in marks:
                o(f"ds_write_b32 v{V_CONSA}, v{V_C}")
                q.append('cons')
            if segneed[cur] > have:
                have = segneed[cur]
                lab = f"L_chk{kh}_{cur + 1}"
                o.label(lab)
                o(f"s_cmp_ge_u32 s{S_F}, {have}")
                o(f"s_cbranch_scc0 L_spin{kh}_{cur + 1}")
                stubs.label(f"L_spin{kh}_{cur + 1}")
                stubs(f"ds_read_b32 v{V_F}, v{V_RDY}")
                stubs("s_waitcnt lgkmcnt(0)")
                stubs(f"v_readfirstlane_b32 s{S_F}, v{V_F}")
                bail(stubs, cfg)
                stubs(f"s_branch {lab}")
                if cfg.stamps and cur == -1:
                    o("s_memrealtime s[62:63]")
                    o("s_memtime s[72:73]")
                    o("s_waitcnt lgkmcnt(0)")
        elif it[0] == 'rdA':
            _, slot, off, buf = it
            r = AF + 4 * slot
            o(f"ds_read_b128 v[{r}:{r + 3}], v{V_XA} offset:{off}")
            q.append(('A', slot))
        elif it[0] == 'rdB':
            _, t, h, off, buf = it
            r = BF + 4 * t + 2 * h
            o(f"ds_read_b64_tr_b16 v[{r}:{r + 1}], v{V_WB} offset:{off}")
            q.append(('B', t))
        else:
            _, r, t, slot, first = it
            wait_for({('A', slot), ('B', t)})
            d = ACC + 12 * r + 4 * t
            a = AF + 4 * slot
            w = BF + 4 * t
            c = "0" if first else f"v[{d}:{d + 3}]"
            o(f"v_mfma_f32_16x16x32_bf16 v[{d}:{d + 3}], v[{w}:{w + 3}], v[{a}:{a + 3}], {c}")
            cnt_in_seg += 1
            seglen = 6 if cur == -1 else 18
            need_flag = cur in nxt_need and nxt_need[cur] > have
            if need_flag and cnt_in_seg == max(seglen - 8, 1):
                o(f"ds_read_b32 v{V_F}, v{V_RDY}")
                q.append('flag')
            if need_flag and cnt_in_seg == seglen - 1:
                wait_for({'flag'})
                o(f"v_readfirstlane_b32 s{S_F}, v{V_F}")
            if (cur + 1) in marks and cnt_in_seg == seglen - 2:
                o(f"v_mov_b32 v{V_C}, {cur + 1}")


LV_W0, LV_W1, LV_W2, LV_X, LV_RDY, LV_CA, LV_C, LV_R, LV_PF, LV_D = 1, 2, 3, 4, 5, 6, 7, 8, 12, 13
S_OFF = 50
XMASK = 0xFFFFFF | (0xFFFFFF << 26)


def emit_loader(o, stubs, cfg, steps, stages, need):
    have = 0
    for k, st in enumerate(stages):
        if need[k] > have:
            have = need[k]
            o.label(f"L_lchk{k}")
            o("s_waitcnt lgkmcnt(0)")
            o(f"v_cmp_gt_u32 vcc, {have}, v{LV_C}")
            o(f"s_cbranch_vccnz L_lspin{k}")
            stubs.label(f"L_lspin{k}")
            stubs("s_waitcnt vmcnt(0)")
            stubs(f"v_mov_b32 v{LV_R}, {k}")
            stubs(f"ds_write_b32 v{LV_RDY}, v{LV_R}")
            stubs("s_sleep 1")
            stubs(f"ds_read_b32 v{LV_C}, v{LV_CA}")
            bail(stubs, cfg)
            stubs(f"s_branch L_lchk{k}")
        n = 0
        for b in st:
            if b[0] == 'W':
                _, kh, i = b
                s, p = steps[kh][i]
                o(f"s_mov_b32 m0, {WBASE + (kh * NWS + i % NWS) * WSLOT}")
                o(f"s_mov_b32 s{S_OFF}, {(288 * p + 32 * s) * 288}")
                for j, v in enumerate((LV_W0, LV_W1, LV_W2)):
                    o(f"buffer_load_dwordx4 v{v}, s[{SRD_W}:{SRD_W + 3}], s{S_OFF} offen offset:{1024 * j} lds")
                n += 3
            elif b[0] == 'X':
                reg = b[1]
                o("s_mov_b64 exec, s[52:53]")
                for j in range(18):
                    jj = j % 5
                    if jj == 0:
                        o(f"s_mov_b32 m0, {(reg % NXS) * XREG + j * 832}")
                    o(f"s_mov_b32 s{S_OFF}, {lam(reg) * 128 + j * 6912 - jj * 832}")
                    if j == 17:
                        o("s_mov_b64 exec, 0xffff")
                    o(f"buffer_load_dwordx4 v{LV_X}, s[{SRD_X}:{SRD_X + 3}], s{S_OFF} offen offset:{jj * 832} lds")
                o("s_mov_b64 exec, -1")
                n += 18
            elif b[0] == 'PF':
                o(f"s_mov_b32 s{S_OFF}, {32 * b[1] * 288}")
                o(f"buffer_load_dword v{LV_D}, v{LV_PF}, s[{SRD_W}:{SRD_W + 3}], s{S_OFF} offen")
                n += 1
        if k == 0:
            o("s_barrier")
        if k + 1 < len(stages) and need[k + 1] > have:
            o(f"ds_read_b32 v{LV_C}, v{LV_CA}")
        assert n <= 63
        if k >= 1:
            o(f"s_waitcnt vmcnt({n})")
            lvl = k + 1 if n == 0 else k
            o(f"v_mov_b32 v{LV_R}, {lvl}")
            o(f"ds_write_b32 v{LV_RDY}, v{LV_R}")
    o("s_waitcnt lgkmcnt(0)")


def srd(o, d, lo, hi, size):
    o(f"s_mov_b32 s{d}, {lo}")
    o(f"s_mov_b32 s{d + 1}, {hi}")
    o(f"s_mov_b32 s{d + 2}, {size}")
    o(f"s_mov_b32 s{d + 3}, 0x20000")


def generate(cfg):
    steps, stages, streams, marks, need = plan_sync(cfg)
    o = Out()
    stubs = Out()
    if cfg.stamps:
        o("s_memrealtime s[60:61]")
    o("s_load_dwordx16 s[4:19], s[0:1], 0")
    o("s_mov_b32 s80, 0")
    o("s_cmp_ge_u32 s2, 256")
    o("s_cbranch_scc1 L_end")
    o(f"v_lshrrev_b32 v1, 6, v0")
    o(f"s_and_b32 s3, s2, 7")
    o(f"s_lshl_b32 s3, s3, 5")
    o(f"v_readfirstlane_b32 s{S_WAVE}, v1")
    o(f"s_lshr_b32 s{S_U}, s2, 3")
    o(f"s_add_u32 s{S_U}, s{S_U}, s3")
    o(f"s_cmp_ge_u32 s{S_U}, 252")
    o("s_cbranch_scc1 L_end")
    o(f"v_and_b32 v{V_LANE}, 63, v0")
    o(f"s_mul_hi_u32 s{S_TB}, s{S_U}, 0x55555556")
    o(f"s_mul_i32 s3, s{S_TB}, 3")
    o(f"s_sub_u32 s{S_T}, s{S_U}, s3")
    o(f"s_cmp_ge_u32 s{S_TB}, {NT}")
    o(f"s_cselect_b32 s{S_B}, 1, 0")
    o(f"s_cselect_b32 s3, {NT}, 0")
    o(f"s_sub_u32 s{S_TB}, s{S_TB}, s3")
    if cfg.probe is not None:
        o("s_waitcnt lgkmcnt(0)")
        o("s_memrealtime s[82:83]")
        o(f"s_cmp_lg_u32 s{S_WAVE}, 0")
        o("s_cbranch_scc1 L_noprobe")
        o(f"s_mul_i32 s3, s{S_U}, 36096")
        o("v_mov_b32 v2, s3")
        o("s_waitcnt lgkmcnt(0)")
        o("global_load_dword v3, v2, s[4:5]")
        o("s_waitcnt vmcnt(0)")
        o("s_memrealtime s[84:85]")
        o("s_waitcnt lgkmcnt(0)")
        o("global_load_dword v3, v2, s[4:5] offset:2048")
        o("s_waitcnt vmcnt(0)")
        o("s_memrealtime s[86:87]")
        o(f"s_mul_i32 s3, s{S_U}, 4992")
        o("v_mov_b32 v2, s3")
        o("s_waitcnt lgkmcnt(0)")
        o("global_load_dword v3, v2, s[6:7]")
        o("s_waitcnt vmcnt(0)")
        o("s_memrealtime s[88:89]")
        o("s_waitcnt lgkmcnt(0)")
        o("global_load_dword v3, v2, s[6:7] offset:2048")
        o("s_waitcnt vmcnt(0)")
        o("s_memrealtime s[90:91]")
        o("v_mov_b32 v2, 0")
        o("v_mov_b32 v3, s60")
        o("v_not_b32 v4, v3")
        o("s_mov_b64 exec, 1")
        o("global_atomic_umax v2, v3, s[16:17] offset:240 sc1")
        o("global_atomic_umax v2, v4, s[16:17] offset:244 sc1")
        o("s_mov_b64 exec, -1")
        o("s_waitcnt vmcnt(0) lgkmcnt(0)")
        o.label("L_noprobe")
        o("s_barrier")
    o(f"s_cmp_lt_u32 s{S_WAVE}, 4")
    o("s_cbranch_scc1 L_compute")
    o(f"s_cmp_gt_u32 s{S_WAVE}, 4")
    o("s_cbranch_scc1 L_helper")

    o(f"v_lshlrev_b32 v{LV_RDY}, 2, v{V_LANE}")
    o(f"v_add_u32 v{LV_RDY}, {READY}, v{LV_RDY}")
    o(f"v_mov_b32 v{LV_R}, 0")
    for j in range(5):
        o(f"ds_write_b32 v{LV_RDY}, v{LV_R} offset:{256 * j}")
    o(f"s_mul_i32 s3, s{S_T}, 96")
    for j, v in enumerate((LV_W0, LV_W1, LV_W2)):
        o(f"v_add_u32 v14, {64 * j}, v{V_LANE}")
        o(f"v_mul_u32_u24 v15, 171, v14")
        o(f"v_lshrrev_b32 v15, 10, v15")
        o(f"v_mul_u32_u24 v16, 6, v15")
        o(f"v_sub_u32 v14, v14, v16")
        o(f"v_bfe_u32 v16, v15, 2, 2")
        o(f"v_lshrrev_b32 v17, 4, v15")
        o(f"v_and_b32 v15, 3, v15")
        o(f"v_lshl_add_u32 v15, v16, 3, v15")
        o(f"v_lshl_add_u32 v15, v17, 2, v15")
        o(f"v_mul_u32_u24 v15, 288, v15")
        o(f"v_lshl_add_u32 v15, v14, 4, v15")
        o(f"v_add_u32 v15, s3, v15")
        o(f"v_subrev_u32 v{v}, {1024 * j}, v15")
    o(f"v_cmp_le_u32 vcc, 26, v{V_LANE}")
    o(f"v_subrev_u32 v14, 2, v{V_LANE}")
    o(f"s_mov_b32 s52, {XMASK & 0xFFFFFFFF}")
    o(f"s_mov_b32 s53, {XMASK >> 32}")
    o(f"v_cndmask_b32 v14, v{V_LANE}, v14, vcc")
    o(f"v_lshrrev_b32 v15, 3, v14")
    o(f"v_and_b32 v14, 7, v14")
    o(f"v_mul_u32_u24 v15, 1152, v15")
    o(f"v_lshl_add_u32 v{LV_X}, v14, 4, v15")
    o(f"v_and_b32 v14, 3, v{V_LANE}")
    o(f"v_mul_u32_u24 v14, 260, v14")
    o(f"v_add_u32 v{LV_CA}, {CONS}, v14")
    o(f"s_and_b32 s3, s{S_U}, 31")
    o(f"s_lshr_b32 s45, s3, 1")
    o(f"s_mul_i32 s45, s45, {288 * 288}")
    o(f"s_and_b32 s3, s3, 1")
    o(f"s_mul_i32 s3, s3, {36 * 128}")
    o(f"s_add_u32 s3, s3, s45")
    o(f"v_min_u32 v14, 35, v{V_LANE}")
    o(f"v_lshlrev_b32 v14, 7, v14")
    o(f"v_add_u32 v{LV_PF}, s3, v14")
    o(f"s_mul_i32 s45, s{S_B}, {XBATCH}")
    o(f"s_mul_i32 s46, s{S_TB}, {192 * 576}")
    o(f"s_add_u32 s45, s45, s46")
    o(f"s_sub_u32 s46, {XBATCH - 288}, s46")
    o("s_waitcnt lgkmcnt(0)")
    o(f"s_add_u32 s{SRD_X}, s4, s45")
    o(f"s_addc_u32 s{SRD_X + 1}, s5, 0")
    o(f"s_mov_b32 s{SRD_X + 2}, s46")
    o(f"s_mov_b32 s{SRD_X + 3}, 0x20000")
    srd(o, SRD_W, "s6", "s7", WBYTES)
    emit_loader(o, stubs, cfg, steps, stages, need)
    o("s_barrier")
    o("s_barrier")
    o(f"v_lshlrev_b32 v1, 4, v{V_LANE}")
    o(f"v_add_u32 v2, {PART}, v1")
    o("s_mov_b64 exec, 0xffffff")
    for w in range(4):
        o(f"ds_read_b128 v[{16 + 4 * w}:{19 + 4 * w}], v2 offset:{384 * w}")
    srd(o, SRD_WS, "s18", "s19", "0x10000000")
    o(f"s_mul_i32 s3, s{S_B}, 3")
    o(f"s_add_u32 s3, s3, s{S_T}")
    o(f"s_mul_i32 s3, s3, {GRP_STRIDE}")
    o(f"s_mul_i32 s45, s{S_TB}, {REC}")
    o(f"s_add_u32 s3, s3, s45")
    o("s_waitcnt lgkmcnt(2)")
    o("v_pk_add_f32 v[16:17], v[16:17], v[20:21]")
    o("v_pk_add_f32 v[18:19], v[18:19], v[22:23]")
    o("s_waitcnt lgkmcnt(0)")
    o("v_pk_add_f32 v[24:25], v[24:25], v[28:29]")
    o("v_pk_add_f32 v[26:27], v[26:27], v[30:31]")
    o("v_pk_add_f32 v[16:17], v[16:17], v[24:25]")
    o("v_pk_add_f32 v[18:19], v[18:19], v[26:27]")
    for i in range(4):
        o(f"v_min_u32 v{16 + i}, -2, v{16 + i}")
    o(f"buffer_store_dwordx4 v[16:19], v1, s[{SRD_WS}:{SRD_WS + 3}], s3 offen sc1")
    o("s_mov_b64 exec, -1")
    o("s_barrier")
    o("s_endpgm")

    o.label("L_helper")
    o(f"s_sub_u32 s45, s{S_WAVE}, 5")
    o(f"s_mul_i32 s3, s{S_B}, 3")
    o(f"s_add_u32 s46, s3, s{S_T}")
    o(f"s_mul_i32 s47, s46, {GRP_STRIDE}")
    o(f"s_lshl_b32 s46, s46, 5")
    o(f"v_and_b32 v2, 7, v{V_LANE}")
    o(f"s_mul_i32 s3, s{S_T}, 96")
    o(f"s_lshl_b32 s49, s45, 5")
    o(f"s_add_u32 s3, s3, s49")
    o(f"v_lshl_add_u32 v3, v2, 2, s3")
    o(f"v_lshlrev_b32 v1, 4, v{V_LANE}")
    o(f"v_mov_b32 v12, 0")
    o("s_waitcnt lgkmcnt(0)")
    srd(o, SRD_WS, "s18", "s19", "0x10000000")
    srd(o, SRD_DBG, "s16", "s17", 256)
    srd(o, SRD_W, "s6", "s7", WBYTES)
    o("s_cmp_eq_u32 s45, 1")
    o("s_cbranch_scc1 L_h_init")
    o("s_cmp_eq_u32 s45, 2")
    o("s_cbranch_scc1 L_h_wpf")
    if cfg.code_pf:
        o("s_getpc_b64 s[50:51]")
        o.label("L_pcref")
        o(f"s_sub_u32 s50, s50, L_pcref-{KNAME}_kernel")
        o("s_subb_u32 s51, s51, 0")
        o(f"s_and_b32 s3, s{S_U}, 7")
        o(f"v_lshl_add_u32 v4, v{V_LANE}, 3, s3")
        o(f"v_lshlrev_b32 v4, 7, v4")
        o(f"v_min_u32 v4, L_codeend-{KNAME}_kernel-4, v4")
        o("global_load_dword v5, v4, s[50:51]")
    o("s_branch L_h_common")
    o.label("L_h_wpf")
    if cfg.w_mall_pf:
        o(f"v_min_u32 v4, 39, v{V_LANE}")
        o(f"s_mul_i32 s3, s{S_U}, 40")
        o(f"v_add_lshl_u32 v4, v4, s3, 7")
        o(f"buffer_load_dword v5, v4, s[{SRD_W}:{SRD_W + 3}], 0 offen")
    o("s_branch L_h_common")
    o.label("L_h_init")
    for i in range(4):
        o(f"v_mov_b32 v{16 + i}, -1")
    o(f"s_mul_i32 s3, s{S_TB}, {REC}")
    o(f"s_add_u32 s3, s3, s47")
    o("s_mov_b64 exec, 0xffffff")
    o(f"buffer_store_dwordx4 v[16:19], v1, s[{SRD_WS}:{SRD_WS + 3}], s3 offen sc1")
    o("s_mov_b64 exec, -1")
    o.label("L_h_common")
    o("global_load_dword v6, v3, s[8:9]")
    o("global_load_dword v7, v3, s[10:11]")
    o("global_load_dword v8, v3, s[12:13]")
    o("s_barrier")
    o("s_cmp_lg_u32 s45, 1")
    o("s_cbranch_scc1 L_h_noinit")
    o("s_mov_b64 exec, 1")
    o("v_mov_b32 v5, 1")
    o("s_waitcnt vmcnt(0)")
    o(f"buffer_atomic_add v5, v12, s[{SRD_DBG}:{SRD_DBG + 3}], s46 offen sc1")
    o("s_mov_b64 exec, -1")
    o.label("L_h_noinit")
    o("s_waitcnt vmcnt(0)")
    o(f"v_mov_b32 v4, {READY}")
    o.label("L_h_wait")
    bail(o, cfg)
    o("s_sleep 16")
    o("ds_read_b32 v5, v4")
    o("s_waitcnt lgkmcnt(0)")
    o(f"v_cmp_gt_u32 vcc, {len(stages) - 1}, v5")
    o("s_cbranch_vccnz L_h_wait")
    o.label("L_h_cnt")
    bail(o, cfg)
    o(f"buffer_load_dword v5, v12, s[{SRD_DBG}:{SRD_DBG + 3}], s46 offen sc1")
    o("s_waitcnt vmcnt(0)")
    o(f"v_cmp_gt_u32 vcc, {NT}, v5")
    o("s_cbranch_vccnz L_h_cnt")
    o(f"v_lshrrev_b32 v4, 3, v{V_LANE}")
    o(f"v_mul_u32_u24 v4, {REC}, v4")
    o(f"v_lshl_add_u32 v4, v2, 4, v4")
    o(f"s_lshl_b32 s3, s45, 7")
    o(f"s_add_u32 s54, s47, s3")
    for i in range(1, 6):
        o(f"s_add_u32 s{54 + i}, s54, {8 * REC * i}")
    for i in range(4):
        o(f"v_mov_b32 v{36 + i}, 0")
    o(f"v_lshlrev_b32 v40, 16, v6")
    o(f"v_and_b32 v41, 0xffff0000, v6")
    o(f"v_lshlrev_b32 v42, 16, v7")
    o(f"v_and_b32 v43, 0xffff0000, v7")
    o(f"v_lshlrev_b32 v44, 16, v8")
    o(f"v_and_b32 v45, 0xffff0000, v8")
    o(f"s_lshl_b32 s3, s45, 6")
    o(f"s_add_u32 s3, s3, {SCSH}")
    o(f"v_lshl_add_u32 v46, v2, 3, s3")
    o("s_barrier")
    o("s_barrier")
    o.label("L_h_poll")
    bail(o, cfg)
    for i in range(5):
        o(f"buffer_load_dwordx4 v[{16 + 4 * i}:{19 + 4 * i}], v4, s[{SRD_WS}:{SRD_WS + 3}], s{54 + i} offen sc1")
    o("s_mov_b64 exec, 0xffff")
    o(f"buffer_load_dwordx4 v[36:39], v4, s[{SRD_WS}:{SRD_WS + 3}], s59 offen sc1")
    o("s_mov_b64 exec, -1")
    o("s_waitcnt vmcnt(5)")
    o("v_max3_u32 v5, v16, v17, v18")
    prev = 19
    for i in range(1, 6):
        o(f"s_waitcnt vmcnt({5 - i})")
        b0 = 16 + 4 * i
        o(f"v_max3_u32 v5, v5, v{prev}, v{b0}")
        o(f"v_max3_u32 v5, v5, v{b0 + 1}, v{b0 + 2}")
        prev = b0 + 3
    o(f"v_max_u32 v5, v5, v{prev}")
    o("v_cmp_eq_u32 vcc, -1, v5")
    o("s_cbranch_vccnz L_h_poll")
    for a, b in ((16, 20), (24, 28), (32, 36), (16, 24), (16, 32)):
        o(f"v_pk_add_f32 v[{a}:{a + 1}], v[{a}:{a + 1}], v[{b}:{b + 1}]")
        o(f"v_pk_add_f32 v[{a + 2}:{a + 3}], v[{a + 2}:{a + 3}], v[{b + 2}:{b + 3}]")
    o("s_nop 1")
    for i in range(4):
        o(f"v_add_f32_dpp v{16 + i}, v{16 + i}, v{16 + i} row_ror:8 row_mask:0xf bank_mask:0xf")
    for i in range(4):
        o(f"v_mov_b32 v{20 + i}, v{16 + i}")
    o("s_nop 1")
    for i in range(4):
        o(f"v_permlane16_swap_b32 v{16 + i}, v{20 + i}")
    for i in range(4):
        o(f"v_add_f32 v{16 + i}, v{16 + i}, v{20 + i}")
    for i in range(4):
        o(f"v_mov_b32 v{20 + i}, v{16 + i}")
    o("s_nop 1")
    for i in range(4):
        o(f"v_permlane32_swap_b32 v{16 + i}, v{20 + i}")
    import struct
    invl = struct.unpack("<I", struct.pack("<f", 1.0 / L))[0]
    eps = struct.unpack("<I", struct.pack("<f", 1e-5))[0]
    for i in range(4):
        o(f"v_add_f32 v{16 + i}, v{16 + i}, v{20 + i}")
    for i in range(4):
        o(f"v_mul_f32 v{16 + i}, {invl:#x}, v{16 + i}")
    o("v_fma_f32 v17, -v16, v16, v17")
    o("v_fma_f32 v19, -v18, v18, v19")
    o("v_max_f32 v17, 0, v17")
    o("v_max_f32 v19, 0, v19")
    o(f"v_add_f32 v17, {eps:#x}, v17")
    o(f"v_add_f32 v19, {eps:#x}, v19")
    o("v_rsq_f32 v17, v17")
    o("v_rsq_f32 v19, v19")
    o("v_add_f32 v16, v16, v40")
    o("v_add_f32 v18, v18, v41")
    o("v_sub_f32 v16, v40, v16")
    o("v_sub_f32 v18, v41, v18")
    o("v_mul_f32 v20, v42, v17")
    o("v_mul_f32 v21, v43, v19")
    o("v_fma_f32 v22, v16, v20, v44")
    o("v_fma_f32 v23, v18, v21, v45")
    o("s_mov_b64 exec, 0xff")
    o("ds_write_b64 v46, v[20:21]")
    o("ds_write_b64 v46, v[22:23] offset:192")
    o("s_waitcnt lgkmcnt(0)")
    o("s_barrier")
    o("s_endpgm")

    o.label("L_compute")
    if cfg.prio:
        o("s_setprio 2")
    o(f"v_and_b32 v12, 15, v{V_LANE}")
    o(f"v_lshrrev_b32 v13, 4, v{V_LANE}")
    o(f"s_and_b32 s45, s{S_WAVE}, 1")
    o(f"s_lshr_b32 s46, s{S_WAVE}, 1")
    o(f"v_mul_u32_u24 v{V_XA}, {XGRP}, v12")
    o(f"v_lshl_add_u32 v{V_XA}, v13, 4, v{V_XA}")
    o(f"s_mul_i32 s3, s45, {16 * XGRP}")
    o(f"v_add_u32 v{V_XA}, s3, v{V_XA}")
    o(f"s_mul_i32 s3, s46, {NWS * WSLOT}")
    o(f"s_add_u32 s3, s3, {WBASE}")
    o(f"v_mul_u32_u24 v{V_WB}, 24, v{V_LANE}")
    o(f"v_add_u32 v{V_WB}, s3, v{V_WB}")
    o(f"v_mov_b32 v{V_RDY}, {READY}")
    o(f"s_lshl_b32 s3, s{S_WAVE}, 8")
    o(f"s_add_u32 s3, s3, {CONS}")
    o(f"v_lshl_add_u32 v{V_CONSA}, v{V_LANE}, 2, s3")
    o(f"s_mul_i32 s3, s45, 96")
    o(f"s_mul_i32 s47, s46, 3")
    o(f"s_add_u32 s3, s3, s47")
    o(f"v_mul_u32_u24 v14, 6, v12")
    o(f"v_add_u32 v14, s3, v14")
    o(f"s_mul_i32 s47, s{S_TB}, 192")
    o(f"s_sub_u32 s47, {L}, s47")
    for r in range(3):
        o(f"v_add_u32 v15, {r}, v14")
        o(f"v_cmp_gt_u32 s[{54 + 2 * r}:{55 + 2 * r}], s47, v15")
    o(f"v_mul_u32_u24 v14, 288, v14")
    o(f"v_mul_u32_u24 v15, 24, v13")
    o(f"s_mul_i32 s3, s{S_T}, 96")
    o(f"v_add3_u32 v{V_OUT}, v14, v15, s3")
    o(f"s_mul_i32 s3, s45, 9216")
    o(f"s_add_u32 s3, s3, {WBASE + 6 * WSLOT}")
    o(f"v_lshl_add_u32 v{V_EX}, v{V_LANE}, 4, s3")
    o(f"s_mul_i32 s3, s{S_B}, {L}")
    o(f"s_mul_i32 s49, s{S_TB}, 192")
    o(f"s_add_u32 s3, s3, s49")
    o(f"s_mul_i32 s3, s3, 288")
    o(f"s_mul_i32 s47, s47, 288")
    o(f"s_mov_b32 s{S_F}, 0")
    o("s_waitcnt lgkmcnt(0)")
    o(f"s_add_u32 s{SRD_O}, s14, s3")
    o(f"s_addc_u32 s{SRD_O + 1}, s15, 0")
    o(f"s_mov_b32 s{SRD_O + 2}, s47")
    o(f"s_mov_b32 s{SRD_O + 3}, 0x20000")
    if cfg.stamps:
        srd(o, SRD_WS, "s18", "s19", "0x10000000")
    o("s_barrier")
    o("s_cmp_eq_u32 s46, 1")
    o("s_cbranch_scc1 L_kh1")
    Y = 152
    for kh in range(2):
        o.label(f"L_kh{kh}")
        emit_compute(o, stubs, cfg, kh, streams[kh][0], streams[kh][1], marks)
        if cfg.stamps:
            o("s_memrealtime s[64:65]")
            o("s_memtime s[74:75]")
        send = ACC + 36 * (1 - kh)
        keep = ACC + 36 * kh
        o("s_nop 7")
        for i in range(9):
            o(f"ds_write_b128 v{V_EX}, v[{send + 4 * i}:{send + 4 * i + 3}] offset:{kh * NWS * WSLOT + 1024 * i}")
        o("s_waitcnt lgkmcnt(0)")
        o("s_barrier")
        for i in range(9):
            o(f"ds_read_b128 v[{Y + 4 * i}:{Y + 4 * i + 3}], v{V_EX} offset:{(1 - kh) * NWS * WSLOT + 1024 * i}")
        for i in range(24):
            o(f"v_mov_b32 v{BF + i}, 0")
        for i in range(9):
            o(f"s_waitcnt lgkmcnt({8 - i})")
            for hh in range(2):
                a = Y + 4 * i + 2 * hh
                b = keep + 4 * i + 2 * hh
                o(f"v_pk_add_f32 v[{a}:{a + 1}], v[{a}:{a + 1}], v[{b}:{b + 1}]")
        if kh == 0:
            o("s_branch L_epi")
    o.label("L_epi")
    SM, SQ = BF, BF + 12
    for r in range(3):
        o(f"s_mov_b64 exec, s[{54 + 2 * r}:{55 + 2 * r}]")
        for c in range(0, 12, 2):
            y = Y + 12 * r + c
            o(f"v_pk_add_f32 v[{SM + c}:{SM + c + 1}], v[{SM + c}:{SM + c + 1}], v[{y}:{y + 1}]")
            o(f"v_pk_fma_f32 v[{SQ + c}:{SQ + c + 1}], v[{y}:{y + 1}], v[{y}:{y + 1}], v[{SQ + c}:{SQ + c + 1}]")
    o("s_mov_b64 exec, -1")
    o("s_nop 1")
    for base in (SM, SQ):
        for c in range(6):
            o(f"v_add_f32_dpp v{base + c}, v{base + c}, v{base + c} row_ror:8 row_mask:0xf bank_mask:0x3")
    for base in (SM, SQ):
        for c in range(6):
            o(f"v_add_f32_dpp v{base + c}, v{base + 6 + c}, v{base + 6 + c} row_ror:8 row_mask:0xf bank_mask:0xc")
    P = 120
    for si, base in enumerate((SM, SQ)):
        for c in range(3):
            o(f"v_add_f32_dpp v{P + 2 * c + si}, v{base + c}, v{base + c} row_shl:4 row_mask:0xf bank_mask:0x5")
    for si, base in enumerate((SM, SQ)):
        for c in range(3):
            o(f"v_add_f32_dpp v{P + 2 * c + si}, v{base + 3 + c}, v{base + 3 + c} row_shr:4 row_mask:0xf bank_mask:0xa")
    order = [P, P + 2, P + 4, P + 1, P + 3, P + 5]
    for perm in ("[1,0,3,2]", "[2,3,0,1]"):
        for v in order:
            o(f"v_add_f32_dpp v{v}, v{v}, v{v} quad_perm:{perm} row_mask:0xf bank_mask:0xf")
    o(f"v_lshrrev_b32 v12, 2, v{V_LANE}")
    o(f"v_mul_u32_u24 v12, 24, v12")
    o(f"s_mul_i32 s3, s{S_WAVE}, 384")
    o(f"s_add_u32 s3, s3, {PART}")
    o(f"v_add_u32 v12, s3, v12")
    o("s_mov_b32 exec_lo, 0x11111111")
    o("s_mov_b32 exec_hi, 0x11111111")
    for c in range(3):
        o(f"ds_write_b64 v12, v[{P + 2 * c}:{P + 2 * c + 1}] offset:{8 * c}")
    o("s_mov_b64 exec, -1")
    o(f"v_mul_u32_u24 v12, 48, v13")
    o(f"v_add_u32 v12, {SCSH}, v12")
    o("s_waitcnt lgkmcnt(0)")
    o("s_barrier")
    if cfg.stamps:
        o("s_memrealtime s[66:67]")
    import math
    k0 = -2.0 * math.log2(math.e) * math.sqrt(2.0 / math.pi)
    k1 = k0 * 0.044715
    f2u = lambda x: struct.unpack("<I", struct.pack("<f", x))[0]
    o(f"v_mov_b32 v14, {f2u(k0):#x}")
    o(f"v_mov_b32 v15, {f2u(k0):#x}")
    o(f"s_mov_b32 s50, {f2u(k1):#x}")
    o(f"s_mov_b32 s51, {f2u(k1):#x}")
    o("s_barrier")
    if cfg.stamps:
        o("s_memrealtime s[68:69]")
    SC, SH = 16, 28
    for i in range(3):
        o(f"ds_read_b128 v[{SC + 4 * i}:{SC + 4 * i + 3}], v12 offset:{16 * i}")
        o(f"ds_read_b128 v[{SH + 4 * i}:{SH + 4 * i + 3}], v12 offset:{192 + 16 * i}")
    o("s_waitcnt lgkmcnt(0)")
    for r in range(3):
        y0 = Y + 12 * r
        T = 40 + 12 * r
        PK = 100 + 8 * r
        pr = lambda b, c: f"v[{b + c}:{b + c + 1}]"
        for c in range(0, 12, 2):
            o(f"v_pk_fma_f32 {pr(y0, c)}, {pr(y0, c)}, {pr(SC, c)}, {pr(SH, c)}")
        for c in range(0, 12, 2):
            o(f"v_pk_mul_f32 {pr(T, c)}, {pr(y0, c)}, {pr(y0, c)}")
        for c in range(0, 12, 2):
            o(f"v_pk_fma_f32 {pr(T, c)}, {pr(T, c)}, s[50:51], v[14:15]")
        for c in range(0, 12, 2):
            o(f"v_pk_mul_f32 {pr(T, c)}, {pr(T, c)}, {pr(y0, c)}")
        for c in range(12):
            o(f"v_exp_f32 v{T + c}, v{T + c}")
        for c in range(0, 12, 2):
            o(f"v_pk_add_f32 {pr(T, c)}, {pr(T, c)}, 1.0 op_sel_hi:[1,0]")
        for c in range(12):
            o(f"v_rcp_f32 v{T + c}, v{T + c}")
        for c in range(0, 12, 2):
            o(f"v_pk_mul_f32 {pr(T, c)}, {pr(T, c)}, {pr(y0, c)}")
        for c in range(0, 12, 2):
            o(f"v_cvt_pk_bf16_f32 v{PK + c // 2}, v{T + c}, v{T + c + 1}")
        o(f"buffer_store_dwordx4 v[{PK}:{PK + 3}], v{V_OUT}, s[{SRD_O}:{SRD_O + 3}], 0 offen offset:{288 * r}")
        o(f"buffer_store_dwordx2 v[{PK + 4}:{PK + 5}], v{V_OUT}, s[{SRD_O}:{SRD_O + 3}], 0 offen offset:{288 * r + 16}")
    if cfg.stamps:
        o("s_memrealtime s[76:77]")
        o("s_waitcnt vmcnt(0)")
        o("s_memrealtime s[70:71]")
        o("s_waitcnt lgkmcnt(0)")
        o("s_sub_u32 s74, s74, s72")
        o(f"s_cmp_lg_u32 s{S_WAVE}, 0")
        o("s_cbranch_scc1 L_end")
        if cfg.enc is not None:
            if cfg.encwg is not None:
                o(f"s_cmp_lg_u32 s{S_U}, {cfg.encwg}")
                o("s_cbranch_scc1 L_end")
            sr = (60, 62, 64, 66, 68, 76, 70)[cfg.enc]
            o(f"s_sub_u32 s3, s{sr}, s60")
            if cfg.probe is not None and cfg.probe < 5:
                a, b = ((60, 82), (82, 84), (84, 86), (86, 88), (88, 90))[cfg.probe]
                o(f"s_sub_u32 s3, s{b}, s{a}")
                o("s_mul_i32 s3, s3, 2")
            elif cfg.probe == 5:
                o("v_mov_b32 v2, 0")
                o("global_load_dwordx2 v[4:5], v2, s[16:17] offset:240 sc1")
                o("s_waitcnt vmcnt(0)")
                o("v_not_b32 v5, v5")
                o("v_sub_u32 v4, v4, v5")
                o("s_nop 0")
                o("v_readfirstlane_b32 s3, v4")
                o("s_mul_i32 s3, s3, 2")
            o("s_mul_i32 s3, s3, 10")
            o("s_add_u32 s3, s3, 6000")
            o("s_add_u32 s3, s3, s60")
            o.label("L_enc")
            o("s_memrealtime s[78:79]")
            o("s_waitcnt lgkmcnt(0)")
            o("s_sub_u32 s78, s78, s3")
            o("s_cmp_lt_i32 s78, 0")
            o("s_cbranch_scc1 L_enc")
        o(f"s_mul_i32 s3, s{S_U}, 32")
        o(f"s_add_u32 s3, s3, {STAMP_OFF}")
        o("v_mov_b32 v2, 0")
        o("s_mov_b64 exec, 1")
        for i, s in enumerate((60, 62, 64, 66, 68, 76, 70, 74)):
            o(f"v_mov_b32 v1, s{s}")
            o(f"buffer_store_dword v1, v2, s[{SRD_WS}:{SRD_WS + 3}], s3 offen offset:{4 * i}")
    o.label("L_end")
    o("s_endpgm")
    body = o.text() + "\n" + stubs.text() + "\nL_codeend:\n    s_endpgm"
    head = open("cdna_kernels/" + KNAME + ".s.ref").read().split("; Override launch")[0]
    return f"""{head}; @launch grid=(256,1,1) block=(512,1,1) lds={LDS_BYTES}
.amdgcn_target "amdgcn-amd-amdhsa--gfx950"
.text
.globl {KNAME}_kernel
.p2align 8
.type {KNAME}_kernel,@function
{KNAME}_kernel:
{body}
.section .rodata,"a"
.p2align 6
.amdhsa_kernel {KNAME}_kernel
  .amdhsa_next_free_vgpr 192
  .amdhsa_next_free_sgpr 96
  .amdhsa_accum_offset 192
  .amdhsa_group_segment_fixed_size 0
  .amdhsa_kernarg_size 64
  .amdhsa_user_sgpr_count 2
  .amdhsa_user_sgpr_kernarg_segment_ptr 1
  .amdhsa_system_sgpr_workgroup_id_x 1
  .amdhsa_float_denorm_mode_32 3
.end_amdhsa_kernel
"""


if __name__ == "__main__":
    out = sys.argv[1]
    kw = json.loads(sys.argv[2]) if len(sys.argv) > 2 else {}
    open(out, "w").write(generate(Cfg(**kw)))
```

```python
import sys, json

KNAME = "standalone__self_sup_conv_stem_hubert__speech"
L = 7985
NT = 42
XBATCH = 4608000
WBYTES = 1285632

XGRP = 416
XREG = 35 * XGRP
NXS = 4
WBASE = NXS * XREG
WSLOT = 3072
NWS = 16
FLAG = WBASE + 2 * NWS * WSLOT
READY = FLAG
CONS = FLAG + 256
PART = CONS + 1024
SCSH = PART + 1536
LDS_END = SCSH + 384
LDS_BYTES = 163840
assert LDS_END <= LDS_BYTES

REC = 384
GRP_STRIDE = 48 * REC
STAMP_OFF = 0x1000000

V_XA, V_WB, V_RDY, V_CONSA, V_F, V_C, V_T0, V_T1, V_LANE, V_OUT, V_EX = 1, 2, 3, 4, 5, 6, 7, 8, 9, 10, 11
ACC, BF, AF = 16, 88, 100
S_WAVE, S_T, S_B, S_TB, S_U = 40, 41, 42, 43, 44
S_F = 48
SRD_X, SRD_W, SRD_O, SRD_WS, SRD_DBG = 20, 24, 28, 32, 36


def lam(i):
    return (4 + 5 * i) % 9


def runs_for(kh):
    runs = []
    for s in range(9):
        if s < 5:
            cut, n = 8, 16
        else:
            cut, n = (8 if s % 2 else 7), 15
        runs.append((s, 0, cut) if kh == 0 else (s, cut, n - cut))
    return runs


class Cfg:
    stamps = False
    snake = True
    code_pf = True
    w_mall_pf = True
    w_l2_pf = True
    x_stage_ofs = 0
    prio = True
    safe = True
    enc = None
    encwg = None
    probe = None
    trace = False
    stflag = ''

    def __init__(self, **kw):
        for k, v in kw.items():
            assert hasattr(Cfg, k), k
            setattr(self, k, v)


def bail(o, cfg, limit=400000):
    if cfg.safe:
        o("s_add_u32 s80, s80, 1")
        o(f"s_cmp_gt_u32 s80, {limit}")
        o("s_cbranch_scc1 L_end")


class Out:
    def __init__(self):
        self.l = []

    def __call__(self, s):
        self.l.append("    " + s)

    def label(self, s):
        self.l.append(s + ":")

    def raw(self, s):
        self.l.append(s)

    def text(self):
        return "\n".join(self.l)


def loader_plan(cfg):
    steps = [[(s, p0 + k) for (s, p0, n) in runs_for(kh) for k in range(n)] for kh in range(2)]
    stages = []
    stages.append([('W', 0, 0), ('W', 1, 0), ('X', 0), ('X', 1)])
    stages.append([('W', 0, 1), ('W', 1, 1)])
    stages.append([('W', 0, 2), ('W', 1, 2)])
    stages.append([('W', 0, 3), ('W', 1, 3)])
    i = 4
    while i < 70:
        stages.append([('W', 0, i), ('W', 1, i), ('W', 0, i + 1), ('W', 1, i + 1)])
        i += 2
    first_step = {}
    for kh in range(2):
        for i, (s, p) in enumerate(steps[kh]):
            first_step[s] = min(first_step.get(s, 99), i) if (s in first_step) else i
    stage_of_step = {}
    for k, st in enumerate(stages):
        for b in st:
            if b[0] == 'W':
                stage_of_step[b[2]] = k
    for reg in range(2, 10):
        s = reg - 2
        k = stage_of_step[first_step[s]] + cfg.x_stage_ofs
        if s == 0:
            k = 3
        stages[k].append(('X', reg))
        if cfg.w_l2_pf and s + 1 < 9:
            stages[k].append(('PF', s + 1))
    stages.append([('EX',)])
    return steps, stages


def a_offset(s, rho):
    par, pi = rho & 1, rho >> 1
    hh = 9 * par + s
    h = hh & 1
    reg = s if h == 1 else s + 1
    assert lam(reg) == hh >> 1
    return reg, (reg % NXS) * XREG + (pi // 3) * XGRP + (pi % 3) * 128 + 64 * h


def compute_items(cfg, kh):
    runs = runs_for(kh)
    items = []

    def rdA(run, phi):
        s, p0, n = runs[run]
        reg, off = a_offset(s, p0 + phi)
        return ('rdA', phi, off, ('X', reg))

    def rdB(i, t):
        return [('rdB', t, h, (i % NWS) * WSLOT + 1536 * h + 8 * t, ('W', kh, i)) for h in range(2)]

    items.append(('seg', -1))
    for t in range(2):
        items += rdB(0, t)
    for phi in range(6):
        items.append(rdA(0, phi))
    i = 0
    for rn, (s, p0, n) in enumerate(runs):
        for sg in range(n):
            al = []
            if sg < 4:
                al += [rdA(rn, phi) for phi in (6 + 2 * sg, 7 + 2 * sg) if phi <= n + 4]
            if rn + 1 < len(runs) and sg >= n - 3:
                q = sg - (n - 3)
                al += [rdA(rn + 1, 2 * q), rdA(rn + 1, 2 * q + 1)]
            assert len(al) <= 3
            for t in range(3):
                order = list(range(6))
                if cfg.snake and t == 1:
                    order = order[::-1]
                if t == 0:
                    extra = rdB(i, 2)
                else:
                    extra = rdB(i + 1, t - 1) if i + 1 < 70 else []
                if t == 1:
                    items.append(('seg', i))
                if t >= 1 and al:
                    extra = extra + [al.pop(0)]
                    if t == 2:
                        extra += al
                        al = []
                for k, r in enumerate(order):
                    items.append(('mfma', r, t, sg + r, i == 0))
                    if k < len(extra):
                        items.append(extra[k])
            i += 1
    assert i == 70
    return items


def plan_sync(cfg):
    steps, stages = loader_plan(cfg)
    stage_of = {}
    for k, st in enumerate(stages):
        for b in st:
            stage_of[b] = k
    streams = []
    last_read_seg = {}
    for kh in range(2):
        items = compute_items(cfg, kh)
        segs = []
        for it in items:
            if it[0] == 'seg':
                segs.append([it[1], 0])
            elif it[0] in ('rdA', 'rdB'):
                buf = it[-1]
                segs[-1][1] = max(segs[-1][1], stage_of[buf] + 1)
                last_read_seg[buf] = max(last_read_seg.get(buf, -9), segs[-1][0])
        segs[-1][1] = len(stages)
        streams.append((items, dict(segs)))
    marks = [m for m in range(1, 70, 2)]

    def mark_after(seg):
        return min(m for m in marks if m > seg)

    need = []
    for k, st in enumerate(stages):
        n = 0
        for b in st:
            old = []
            if b[0] == 'W' and b[2] >= NWS:
                old = [('W', b[1], b[2] - NWS)]
            elif b[0] == 'X' and b[1] >= NXS:
                old = [('X', b[1] - NXS)]
            elif b[0] == 'EX':
                old = [('W', kh, i) for kh in range(2) for i in range(54, 60)]
            for o in old:
                n = max(n, mark_after(last_read_seg[o]))
        need.append(n)
    for kh in range(2):
        for seg, rd in streams[kh][1].items():
            for k in range(rd):
                assert need[k] <= max(seg, 0), (kh, seg, k, need[k])
    return steps, stages, streams, marks, need


def emit_compute(o, stubs, cfg, kh, items, segneed, marks):
    q = []
    have = 0
    flag_pending = False

    def wait_for(tags):
        idx = -1
        for n, tg in enumerate(q):
            if tg in tags:
                idx = n
        if idx >= 0:
            left = len(q) - 1 - idx
            o(f"s_waitcnt lgkmcnt({min(left, 15)})")
            del q[:len(q) - min(left, 15)]

    segs = [it[1] for it in items if it[0] == 'seg']
    nxt_need = {}
    for a, b in zip(segs, segs[1:]):
        nxt_need[a] = segneed[b]
    pend = []
    cur = None
    cnt_in_seg = 0
    for it in items:
        if it[0] == 'seg':
            cur = it[1]
            cnt_in_seg = 0
            if cur in marks:
                o(f"ds_write_b32 v{V_CONSA}, v{V_C}")
                q.append('cons')
            if segneed[cur] > have:
                have = segneed[cur]
                lab = f"L_chk{kh}_{cur + 1}"
                o.label(lab)
                o(f"s_cmp_ge_u32 s{S_F}, {have}")
                o(f"s_cbranch_scc0 L_spin{kh}_{cur + 1}")
                stubs.label(f"L_spin{kh}_{cur + 1}")
                stubs(f"ds_read_b32 v{V_F}, v{V_RDY}")
                stubs("s_waitcnt lgkmcnt(0)")
                stubs(f"v_readfirstlane_b32 s{S_F}, v{V_F}")
                bail(stubs, cfg)
                if cfg.trace:
                    stubs(f"v_writelane_b32 v190, s80, {have}")
                stubs(f"s_branch {lab}")
                if cfg.stamps and cur == -1:
                    o("s_memrealtime s[62:63]")
                    o("s_memtime s[72:73]")
                    o("s_waitcnt lgkmcnt(0)")
        elif it[0] == 'rdA':
            _, slot, off, buf = it
            r = AF + 4 * slot
            o(f"ds_read_b128 v[{r}:{r + 3}], v{V_XA} offset:{off}")
            q.append(('A', slot))
        elif it[0] == 'rdB':
            _, t, h, off, buf = it
            r = BF + 4 * t + 2 * h
            o(f"ds_read_b64_tr_b16 v[{r}:{r + 1}], v{V_WB} offset:{off}")
            q.append(('B', t))
        else:
            _, r, t, slot, first = it
            wait_for({('A', slot), ('B', t)})
            d = ACC + 12 * r + 4 * t
            a = AF + 4 * slot
            w = BF + 4 * t
            c = "0" if first else f"v[{d}:{d + 3}]"
            o(f"v_mfma_f32_16x16x32_bf16 v[{d}:{d + 3}], v[{w}:{w + 3}], v[{a}:{a + 3}], {c}")
            cnt_in_seg += 1
            seglen = 6 if cur == -1 else 18
            need_flag = cur in nxt_need and nxt_need[cur] > have
            if need_flag and cnt_in_seg == max(seglen - 8, 1):
                o(f"ds_read_b32 v{V_F}, v{V_RDY}")
                q.append('flag')
            if need_flag and cnt_in_seg == seglen - 1:
                wait_for({'flag'})
                o(f"v_readfirstlane_b32 s{S_F}, v{V_F}")
            if (cur + 1) in marks and cnt_in_seg == seglen - 2:
                o(f"v_mov_b32 v{V_C}, {cur + 1}")


LV_W0, LV_W1, LV_W2, LV_X, LV_RDY, LV_CA, LV_C, LV_R, LV_PF, LV_D = 1, 2, 3, 4, 5, 6, 7, 8, 12, 13
S_OFF = 50
XMASK = 0xFFFFFF | (0xFFFFFF << 26)


def emit_loader(o, stubs, cfg, steps, stages, need):
    have = 0
    for k, st in enumerate(stages):
        if need[k] > have:
            have = need[k]
            o.label(f"L_lchk{k}")
            o("s_waitcnt lgkmcnt(0)")
            o(f"v_cmp_gt_u32 vcc, {have}, v{LV_C}")
            o(f"s_cbranch_vccnz L_lspin{k}")
            stubs.label(f"L_lspin{k}")
            stubs("s_waitcnt vmcnt(0)")
            stubs(f"v_mov_b32 v{LV_R}, {k}")
            stubs(f"ds_write_b32 v{LV_RDY}, v{LV_R}")
            stubs("s_sleep 1")
            stubs(f"ds_read_b32 v{LV_C}, v{LV_CA}")
            bail(stubs, cfg)
            stubs(f"s_branch L_lchk{k}")
        if cfg.trace:
            o("s_memtime s[56:57]")
            o("s_waitcnt lgkmcnt(0)")
            o(f"v_writelane_b32 v40, s56, {k}")
        n = 0
        for b in st:
            if b[0] == 'W':
                _, kh, i = b
                s, p = steps[kh][i]
                o(f"s_mov_b32 m0, {WBASE + (kh * NWS + i % NWS) * WSLOT}")
                o(f"s_mov_b32 s{S_OFF}, {(288 * p + 32 * s) * 288}")
                for j, v in enumerate((LV_W0, LV_W1, LV_W2)):
                    o(f"buffer_load_dwordx4 v{v}, s[{SRD_W}:{SRD_W + 3}], s{S_OFF} offen offset:{1024 * j} lds")
                n += 3
            elif b[0] == 'X':
                reg = b[1]
                o("s_mov_b64 exec, s[52:53]")
                for j in range(18):
                    jj = j % 5
                    if jj == 0:
                        o(f"s_mov_b32 m0, {(reg % NXS) * XREG + j * 832}")
                    o(f"s_mov_b32 s{S_OFF}, {lam(reg) * 128 + j * 6912 - jj * 832}")
                    if j == 17:
                        o("s_mov_b64 exec, 0xffff")
                    o(f"buffer_load_dwordx4 v{LV_X}, s[{SRD_X}:{SRD_X + 3}], s{S_OFF} offen offset:{jj * 832} lds")
                o("s_mov_b64 exec, -1")
                n += 18
            elif b[0] == 'PF':
                o(f"s_mov_b32 s{S_OFF}, {32 * b[1] * 288}")
                o(f"buffer_load_dword v{LV_D}, v{LV_PF}, s[{SRD_W}:{SRD_W + 3}], s{S_OFF} offen")
                n += 1
        if cfg.trace:
            o("s_memtime s[56:57]")
            o("s_waitcnt lgkmcnt(0)")
            o(f"v_writelane_b32 v41, s56, {k}")
        if k == 0:
            o("s_barrier")
        if k + 1 < len(stages) and need[k + 1] > have:
            o(f"ds_read_b32 v{LV_C}, v{LV_CA}")
        assert n <= 63
        if k >= 1:
            o(f"s_waitcnt vmcnt({n})")
            lvl = k + 1 if n == 0 else k
            o(f"v_mov_b32 v{LV_R}, {lvl}")
            o(f"ds_write_b32 v{LV_RDY}, v{LV_R}")
            if cfg.trace:
                o("s_memtime s[56:57]")
                o("s_waitcnt lgkmcnt(0)")
                o(f"v_writelane_b32 v42, s56, {k}")
    o("s_waitcnt lgkmcnt(0)")


def srd(o, d, lo, hi, size):
    o(f"s_mov_b32 s{d}, {lo}")
    o(f"s_mov_b32 s{d + 1}, {hi}")
    o(f"s_mov_b32 s{d + 2}, {size}")
    o(f"s_mov_b32 s{d + 3}, 0x20000")


def generate(cfg):
    steps, stages, streams, marks, need = plan_sync(cfg)
    o = Out()
    stubs = Out()
    if cfg.stamps:
        o("s_memrealtime s[60:61]")
    if cfg.trace:
        o("s_memtime s[58:59]")
        o("v_mov_b32 v190, 0")
    o("s_load_dwordx16 s[4:19], s[0:1], 0")
    o("s_mov_b32 s80, 0")
    o("s_cmp_ge_u32 s2, 256")
    o("s_cbranch_scc1 L_end")
    o(f"v_lshrrev_b32 v1, 6, v0")
    o(f"s_and_b32 s3, s2, 7")
    o(f"s_lshl_b32 s3, s3, 5")
    o(f"v_readfirstlane_b32 s{S_WAVE}, v1")
    o(f"s_lshr_b32 s{S_U}, s2, 3")
    o(f"s_add_u32 s{S_U}, s{S_U}, s3")
    o(f"s_cmp_ge_u32 s{S_U}, 252")
    o("s_cbranch_scc1 L_end")
    o(f"v_and_b32 v{V_LANE}, 63, v0")
    o(f"s_mul_hi_u32 s{S_TB}, s{S_U}, 0x55555556")
    o(f"s_mul_i32 s3, s{S_TB}, 3")
    o(f"s_sub_u32 s{S_T}, s{S_U}, s3")
    o(f"s_cmp_ge_u32 s{S_TB}, {NT}")
    o(f"s_cselect_b32 s{S_B}, 1, 0")
    o(f"s_cselect_b32 s3, {NT}, 0")
    o(f"s_sub_u32 s{S_TB}, s{S_TB}, s3")
    if cfg.probe is not None:
        o("s_waitcnt lgkmcnt(0)")
        o("s_memrealtime s[82:83]")
        o(f"s_cmp_lg_u32 s{S_WAVE}, 0")
        o("s_cbranch_scc1 L_noprobe")
        o(f"s_mul_i32 s3, s{S_U}, 36096")
        o("v_mov_b32 v2, s3")
        o("s_waitcnt lgkmcnt(0)")
        o("global_load_dword v3, v2, s[4:5]")
        o("s_waitcnt vmcnt(0)")
        o("s_memrealtime s[84:85]")
        o("s_waitcnt lgkmcnt(0)")
        o("global_load_dword v3, v2, s[4:5] offset:2048")
        o("s_waitcnt vmcnt(0)")
        o("s_memrealtime s[86:87]")
        o(f"s_mul_i32 s3, s{S_U}, 4992")
        o("v_mov_b32 v2, s3")
        o("s_waitcnt lgkmcnt(0)")
        o("global_load_dword v3, v2, s[6:7]")
        o("s_waitcnt vmcnt(0)")
        o("s_memrealtime s[88:89]")
        o("s_waitcnt lgkmcnt(0)")
        o("global_load_dword v3, v2, s[6:7] offset:2048")
        o("s_waitcnt vmcnt(0)")
        o("s_memrealtime s[90:91]")
        o("v_mov_b32 v2, 0")
        o("v_mov_b32 v3, s60")
        o("v_not_b32 v4, v3")
        o("s_mov_b64 exec, 1")
        o("global_atomic_umax v2, v3, s[16:17] offset:240 sc1")
        o("global_atomic_umax v2, v4, s[16:17] offset:244 sc1")
        o("s_mov_b64 exec, -1")
        o("s_waitcnt vmcnt(0) lgkmcnt(0)")
        o.label("L_noprobe")
        o("s_barrier")
    o(f"s_cmp_lt_u32 s{S_WAVE}, 4")
    o("s_cbranch_scc1 L_compute")
    o(f"s_cmp_gt_u32 s{S_WAVE}, 4")
    o("s_cbranch_scc1 L_helper")

    o(f"v_lshlrev_b32 v{LV_RDY}, 2, v{V_LANE}")
    o(f"v_add_u32 v{LV_RDY}, {READY}, v{LV_RDY}")
    o(f"v_mov_b32 v{LV_R}, 0")
    for j in range(5):
        o(f"ds_write_b32 v{LV_RDY}, v{LV_R} offset:{256 * j}")
    o(f"s_mul_i32 s3, s{S_T}, 96")
    for j, v in enumerate((LV_W0, LV_W1, LV_W2)):
        o(f"v_add_u32 v14, {64 * j}, v{V_LANE}")
        o(f"v_mul_u32_u24 v15, 171, v14")
        o(f"v_lshrrev_b32 v15, 10, v15")
        o(f"v_mul_u32_u24 v16, 6, v15")
        o(f"v_sub_u32 v14, v14, v16")
        o(f"v_bfe_u32 v16, v15, 2, 2")
        o(f"v_lshrrev_b32 v17, 4, v15")
        o(f"v_and_b32 v15, 3, v15")
        o(f"v_lshl_add_u32 v15, v16, 3, v15")
        o(f"v_lshl_add_u32 v15, v17, 2, v15")
        o(f"v_mul_u32_u24 v15, 288, v15")
        o(f"v_lshl_add_u32 v15, v14, 4, v15")
        o(f"v_add_u32 v15, s3, v15")
        o(f"v_subrev_u32 v{v}, {1024 * j}, v15")
    o(f"v_cmp_le_u32 vcc, 26, v{V_LANE}")
    o(f"v_subrev_u32 v14, 2, v{V_LANE}")
    o(f"s_mov_b32 s52, {XMASK & 0xFFFFFFFF}")
    o(f"s_mov_b32 s53, {XMASK >> 32}")
    o(f"v_cndmask_b32 v14, v{V_LANE}, v14, vcc")
    o(f"v_lshrrev_b32 v15, 3, v14")
    o(f"v_and_b32 v14, 7, v14")
    o(f"v_mul_u32_u24 v15, 1152, v15")
    o(f"v_lshl_add_u32 v{LV_X}, v14, 4, v15")
    o(f"v_and_b32 v14, 3, v{V_LANE}")
    o(f"v_mul_u32_u24 v14, 260, v14")
    o(f"v_add_u32 v{LV_CA}, {CONS}, v14")
    o(f"s_and_b32 s3, s{S_U}, 31")
    o(f"s_lshr_b32 s45, s3, 1")
    o(f"s_mul_i32 s45, s45, {288 * 288}")
    o(f"s_and_b32 s3, s3, 1")
    o(f"s_mul_i32 s3, s3, {36 * 128}")
    o(f"s_add_u32 s3, s3, s45")
    o(f"v_min_u32 v14, 35, v{V_LANE}")
    o(f"v_lshlrev_b32 v14, 7, v14")
    o(f"v_add_u32 v{LV_PF}, s3, v14")
    o(f"s_mul_i32 s45, s{S_B}, {XBATCH}")
    o(f"s_mul_i32 s46, s{S_TB}, {192 * 576}")
    o(f"s_add_u32 s45, s45, s46")
    o(f"s_sub_u32 s46, {XBATCH - 288}, s46")
    o("s_waitcnt lgkmcnt(0)")
    o(f"s_add_u32 s{SRD_X}, s4, s45")
    o(f"s_addc_u32 s{SRD_X + 1}, s5, 0")
    o(f"s_mov_b32 s{SRD_X + 2}, s46")
    o(f"s_mov_b32 s{SRD_X + 3}, 0x20000")
    srd(o, SRD_W, "s6", "s7", WBYTES)
    emit_loader(o, stubs, cfg, steps, stages, need)
    o("s_barrier")
    o("s_barrier")
    o(f"v_lshlrev_b32 v1, 4, v{V_LANE}")
    o(f"v_add_u32 v2, {PART}, v1")
    o("s_mov_b64 exec, 0xffffff")
    for w in range(4):
        o(f"ds_read_b128 v[{16 + 4 * w}:{19 + 4 * w}], v2 offset:{384 * w}")
    srd(o, SRD_WS, "s18", "s19", "0x10000000")
    o(f"s_mul_i32 s3, s{S_B}, 3")
    o(f"s_add_u32 s3, s3, s{S_T}")
    o(f"s_mul_i32 s3, s3, {GRP_STRIDE}")
    o(f"s_mul_i32 s45, s{S_TB}, {REC}")
    o(f"s_add_u32 s3, s3, s45")
    o("s_waitcnt lgkmcnt(2)")
    o("v_pk_add_f32 v[16:17], v[16:17], v[20:21]")
    o("v_pk_add_f32 v[18:19], v[18:19], v[22:23]")
    o("s_waitcnt lgkmcnt(0)")
    o("v_pk_add_f32 v[24:25], v[24:25], v[28:29]")
    o("v_pk_add_f32 v[26:27], v[26:27], v[30:31]")
    o("v_pk_add_f32 v[16:17], v[16:17], v[24:25]")
    o("v_pk_add_f32 v[18:19], v[18:19], v[26:27]")
    for i in range(4):
        o(f"v_min_u32 v{16 + i}, -2, v{16 + i}")
    o(f"buffer_store_dwordx4 v[16:19], v1, s[{SRD_WS}:{SRD_WS + 3}], s3 offen sc1")
    o("s_mov_b64 exec, -1")
    o("s_barrier")
    if cfg.trace:
        o(f"s_mul_i32 s3, s{S_U}, 1280")
        o(f"s_add_u32 s3, s3, {2 * STAMP_OFF}")
        o(f"v_lshlrev_b32 v1, 2, v{V_LANE}")
        o("v_writelane_b32 v40, s58, 63")
        for i in range(3):
            o(f"buffer_store_dword v{40 + i}, v1, s[{SRD_WS}:{SRD_WS + 3}], s3 offen offset:{256 * i}")
    o("s_endpgm")

    o.label("L_helper")
    o(f"s_sub_u32 s45, s{S_WAVE}, 5")
    o(f"s_mul_i32 s3, s{S_B}, 3")
    o(f"s_add_u32 s46, s3, s{S_T}")
    o(f"s_mul_i32 s47, s46, {GRP_STRIDE}")
    o(f"s_lshl_b32 s46, s46, 5")
    o(f"v_and_b32 v2, 7, v{V_LANE}")
    o(f"s_mul_i32 s3, s{S_T}, 96")
    o(f"s_lshl_b32 s49, s45, 5")
    o(f"s_add_u32 s3, s3, s49")
    o(f"v_lshl_add_u32 v3, v2, 2, s3")
    o(f"v_lshlrev_b32 v1, 4, v{V_LANE}")
    o(f"v_mov_b32 v12, 0")
    o("s_waitcnt lgkmcnt(0)")
    srd(o, SRD_WS, "s18", "s19", "0x10000000")
    srd(o, SRD_DBG, "s16", "s17", 256)
    srd(o, SRD_W, "s6", "s7", WBYTES)
    o("s_cmp_eq_u32 s45, 1")
    o("s_cbranch_scc1 L_h_init")
    o("s_cmp_eq_u32 s45, 2")
    o("s_cbranch_scc1 L_h_wpf")
    if cfg.code_pf:
        o("s_getpc_b64 s[50:51]")
        o.label("L_pcref")
        o(f"s_sub_u32 s50, s50, L_pcref-{KNAME}_kernel")
        o("s_subb_u32 s51, s51, 0")
        o(f"s_and_b32 s3, s{S_U}, 7")
        o(f"v_lshl_add_u32 v4, v{V_LANE}, 3, s3")
        o(f"v_lshlrev_b32 v4, 7, v4")
        o(f"v_min_u32 v4, L_codeend-{KNAME}_kernel-4, v4")
        o("global_load_dword v5, v4, s[50:51]")
    o("s_branch L_h_common")
    o.label("L_h_wpf")
    if cfg.w_mall_pf:
        o(f"v_min_u32 v4, 39, v{V_LANE}")
        o(f"s_mul_i32 s3, s{S_U}, 40")
        o(f"v_add_lshl_u32 v4, v4, s3, 7")
        o(f"buffer_load_dword v5, v4, s[{SRD_W}:{SRD_W + 3}], 0 offen")
    o("s_branch L_h_common")
    o.label("L_h_init")
    for i in range(4):
        o(f"v_mov_b32 v{16 + i}, -1")
    o(f"s_mul_i32 s3, s{S_TB}, {REC}")
    o(f"s_add_u32 s3, s3, s47")
    o("s_mov_b64 exec, 0xffffff")
    o(f"buffer_store_dwordx4 v[16:19], v1, s[{SRD_WS}:{SRD_WS + 3}], s3 offen sc1")
    o("s_mov_b64 exec, -1")
    o.label("L_h_common")
    o("global_load_dword v6, v3, s[8:9]")
    o("global_load_dword v7, v3, s[10:11]")
    o("global_load_dword v8, v3, s[12:13]")
    o("s_barrier")
    o("s_cmp_lg_u32 s45, 1")
    o("s_cbranch_scc1 L_h_noinit")
    o("s_mov_b64 exec, 1")
    o("v_mov_b32 v5, 1")
    o("s_waitcnt vmcnt(0)")
    o(f"buffer_atomic_add v5, v12, s[{SRD_DBG}:{SRD_DBG + 3}], s46 offen sc1")
    o("s_mov_b64 exec, -1")
    o.label("L_h_noinit")
    o("s_waitcnt vmcnt(0)")
    o(f"v_mov_b32 v4, {READY}")
    o.label("L_h_wait")
    bail(o, cfg)
    o("s_sleep 16")
    o("ds_read_b32 v5, v4")
    o("s_waitcnt lgkmcnt(0)")
    o(f"v_cmp_gt_u32 vcc, {len(stages) - 1}, v5")
    o("s_cbranch_vccnz L_h_wait")
    o.label("L_h_cnt")
    bail(o, cfg)
    o(f"buffer_load_dword v5, v12, s[{SRD_DBG}:{SRD_DBG + 3}], s46 offen sc1")
    o("s_waitcnt vmcnt(0)")
    o(f"v_cmp_gt_u32 vcc, {NT}, v5")
    o("s_cbranch_vccnz L_h_cnt")
    o(f"v_lshrrev_b32 v4, 3, v{V_LANE}")
    o(f"v_mul_u32_u24 v4, {REC}, v4")
    o(f"v_lshl_add_u32 v4, v2, 4, v4")
    o(f"s_lshl_b32 s3, s45, 7")
    o(f"s_add_u32 s54, s47, s3")
    for i in range(1, 6):
        o(f"s_add_u32 s{54 + i}, s54, {8 * REC * i}")
    for i in range(4):
        o(f"v_mov_b32 v{36 + i}, 0")
    o(f"v_lshlrev_b32 v40, 16, v6")
    o(f"v_and_b32 v41, 0xffff0000, v6")
    o(f"v_lshlrev_b32 v42, 16, v7")
    o(f"v_and_b32 v43, 0xffff0000, v7")
    o(f"v_lshlrev_b32 v44, 16, v8")
    o(f"v_and_b32 v45, 0xffff0000, v8")
    o(f"s_lshl_b32 s3, s45, 6")
    o(f"s_add_u32 s3, s3, {SCSH}")
    o(f"v_lshl_add_u32 v46, v2, 3, s3")
    o("s_barrier")
    o("s_barrier")
    o.label("L_h_poll")
    bail(o, cfg)
    for i in range(5):
        o(f"buffer_load_dwordx4 v[{16 + 4 * i}:{19 + 4 * i}], v4, s[{SRD_WS}:{SRD_WS + 3}], s{54 + i} offen sc1")
    o("s_mov_b64 exec, 0xffff")
    o(f"buffer_load_dwordx4 v[36:39], v4, s[{SRD_WS}:{SRD_WS + 3}], s59 offen sc1")
    o("s_mov_b64 exec, -1")
    o("s_waitcnt vmcnt(5)")
    o("v_max3_u32 v5, v16, v17, v18")
    prev = 19
    for i in range(1, 6):
        o(f"s_waitcnt vmcnt({5 - i})")
        b0 = 16 + 4 * i
        o(f"v_max3_u32 v5, v5, v{prev}, v{b0}")
        o(f"v_max3_u32 v5, v5, v{b0 + 1}, v{b0 + 2}")
        prev = b0 + 3
    o(f"v_max_u32 v5, v5, v{prev}")
    o("v_cmp_eq_u32 vcc, -1, v5")
    o("s_cbranch_vccnz L_h_poll")
    for a, b in ((16, 20), (24, 28), (32, 36), (16, 24), (16, 32)):
        o(f"v_pk_add_f32 v[{a}:{a + 1}], v[{a}:{a + 1}], v[{b}:{b + 1}]")
        o(f"v_pk_add_f32 v[{a + 2}:{a + 3}], v[{a + 2}:{a + 3}], v[{b + 2}:{b + 3}]")
    o("s_nop 1")
    for i in range(4):
        o(f"v_add_f32_dpp v{16 + i}, v{16 + i}, v{16 + i} row_ror:8 row_mask:0xf bank_mask:0xf")
    for i in range(4):
        o(f"v_mov_b32 v{20 + i}, v{16 + i}")
    o("s_nop 1")
    for i in range(4):
        o(f"v_permlane16_swap_b32 v{16 + i}, v{20 + i}")
    for i in range(4):
        o(f"v_add_f32 v{16 + i}, v{16 + i}, v{20 + i}")
    for i in range(4):
        o(f"v_mov_b32 v{20 + i}, v{16 + i}")
    o("s_nop 1")
    for i in range(4):
        o(f"v_permlane32_swap_b32 v{16 + i}, v{20 + i}")
    import struct
    invl = struct.unpack("<I", struct.pack("<f", 1.0 / L))[0]
    eps = struct.unpack("<I", struct.pack("<f", 1e-5))[0]
    for i in range(4):
        o(f"v_add_f32 v{16 + i}, v{16 + i}, v{20 + i}")
    for i in range(4):
        o(f"v_mul_f32 v{16 + i}, {invl:#x}, v{16 + i}")
    o("v_fma_f32 v17, -v16, v16, v17")
    o("v_fma_f32 v19, -v18, v18, v19")
    o("v_max_f32 v17, 0, v17")
    o("v_max_f32 v19, 0, v19")
    o(f"v_add_f32 v17, {eps:#x}, v17")
    o(f"v_add_f32 v19, {eps:#x}, v19")
    o("v_rsq_f32 v17, v17")
    o("v_rsq_f32 v19, v19")
    o("v_add_f32 v16, v16, v40")
    o("v_add_f32 v18, v18, v41")
    o("v_sub_f32 v16, v40, v16")
    o("v_sub_f32 v18, v41, v18")
    o("v_mul_f32 v20, v42, v17")
    o("v_mul_f32 v21, v43, v19")
    o("v_fma_f32 v22, v16, v20, v44")
    o("v_fma_f32 v23, v18, v21, v45")
    o("s_mov_b64 exec, 0xff")
    o("ds_write_b64 v46, v[20:21]")
    o("ds_write_b64 v46, v[22:23] offset:192")
    o("s_waitcnt lgkmcnt(0)")
    o("s_barrier")
    o("s_endpgm")

    o.label("L_compute")
    if cfg.prio:
        o("s_setprio 2")
    o(f"v_and_b32 v12, 15, v{V_LANE}")
    o(f"v_lshrrev_b32 v13, 4, v{V_LANE}")
    o(f"s_and_b32 s45, s{S_WAVE}, 1")
    o(f"s_lshr_b32 s46, s{S_WAVE}, 1")
    o(f"v_mul_u32_u24 v{V_XA}, {XGRP}, v12")
    o(f"v_lshl_add_u32 v{V_XA}, v13, 4, v{V_XA}")
    o(f"s_mul_i32 s3, s45, {16 * XGRP}")
    o(f"v_add_u32 v{V_XA}, s3, v{V_XA}")
    o(f"s_mul_i32 s3, s46, {NWS * WSLOT}")
    o(f"s_add_u32 s3, s3, {WBASE}")
    o(f"v_mul_u32_u24 v{V_WB}, 24, v{V_LANE}")
    o(f"v_add_u32 v{V_WB}, s3, v{V_WB}")
    o(f"v_mov_b32 v{V_RDY}, {READY}")
    o(f"s_lshl_b32 s3, s{S_WAVE}, 8")
    o(f"s_add_u32 s3, s3, {CONS}")
    o(f"v_lshl_add_u32 v{V_CONSA}, v{V_LANE}, 2, s3")
    o(f"s_mul_i32 s3, s45, 96")
    o(f"s_mul_i32 s47, s46, 3")
    o(f"s_add_u32 s3, s3, s47")
    o(f"v_mul_u32_u24 v14, 6, v12")
    o(f"v_add_u32 v14, s3, v14")
    o(f"s_mul_i32 s47, s{S_TB}, 192")
    o(f"s_sub_u32 s47, {L}, s47")
    for r in range(3):
        o(f"v_add_u32 v15, {r}, v14")
        o(f"v_cmp_gt_u32 s[{54 + 2 * r}:{55 + 2 * r}], s47, v15")
    o(f"v_mul_u32_u24 v14, 288, v14")
    o(f"v_mul_u32_u24 v15, 24, v13")
    o(f"s_mul_i32 s3, s{S_T}, 96")
    o(f"v_add3_u32 v{V_OUT}, v14, v15, s3")
    o(f"s_mul_i32 s3, s45, 9216")
    o(f"s_add_u32 s3, s3, {WBASE + 6 * WSLOT}")
    o(f"v_lshl_add_u32 v{V_EX}, v{V_LANE}, 4, s3")
    o(f"s_mul_i32 s3, s{S_B}, {L}")
    o(f"s_mul_i32 s49, s{S_TB}, 192")
    o(f"s_add_u32 s3, s3, s49")
    o(f"s_mul_i32 s3, s3, 288")
    o(f"s_mul_i32 s47, s47, 288")
    o(f"s_mov_b32 s{S_F}, 0")
    o("s_waitcnt lgkmcnt(0)")
    o(f"s_add_u32 s{SRD_O}, s14, s3")
    o(f"s_addc_u32 s{SRD_O + 1}, s15, 0")
    o(f"s_mov_b32 s{SRD_O + 2}, s47")
    o(f"s_mov_b32 s{SRD_O + 3}, 0x20000")
    if cfg.stamps:
        srd(o, SRD_WS, "s18", "s19", "0x10000000")
    o("s_barrier")
    o("s_cmp_eq_u32 s46, 1")
    o("s_cbranch_scc1 L_kh1")
    Y = 152
    for kh in range(2):
        o.label(f"L_kh{kh}")
        emit_compute(o, stubs, cfg, kh, streams[kh][0], streams[kh][1], marks)
        if cfg.stamps:
            o("s_memrealtime s[64:65]")
            o("s_memtime s[74:75]")
        send = ACC + 36 * (1 - kh)
        keep = ACC + 36 * kh
        o("s_nop 7")
        for i in range(9):
            o(f"ds_write_b128 v{V_EX}, v[{send + 4 * i}:{send + 4 * i + 3}] offset:{kh * NWS * WSLOT + 1024 * i}")
        o("s_waitcnt lgkmcnt(0)")
        o("s_barrier")
        for i in range(9):
            o(f"ds_read_b128 v[{Y + 4 * i}:{Y + 4 * i + 3}], v{V_EX} offset:{(1 - kh) * NWS * WSLOT + 1024 * i}")
        for i in range(24):
            o(f"v_mov_b32 v{BF + i}, 0")
        for i in range(9):
            o(f"s_waitcnt lgkmcnt({8 - i})")
            for hh in range(2):
                a = Y + 4 * i + 2 * hh
                b = keep + 4 * i + 2 * hh
                o(f"v_pk_add_f32 v[{a}:{a + 1}], v[{a}:{a + 1}], v[{b}:{b + 1}]")
        if kh == 0:
            o("s_branch L_epi")
    o.label("L_epi")
    SM, SQ = BF, BF + 12
    for r in range(3):
        o(f"s_mov_b64 exec, s[{54 + 2 * r}:{55 + 2 * r}]")
        for c in range(0, 12, 2):
            y = Y + 12 * r + c
            o(f"v_pk_add_f32 v[{SM + c}:{SM + c + 1}], v[{SM + c}:{SM + c + 1}], v[{y}:{y + 1}]")
            o(f"v_pk_fma_f32 v[{SQ + c}:{SQ + c + 1}], v[{y}:{y + 1}], v[{y}:{y + 1}], v[{SQ + c}:{SQ + c + 1}]")
    o("s_mov_b64 exec, -1")
    o("s_nop 1")
    for base in (SM, SQ):
        for c in range(6):
            o(f"v_add_f32_dpp v{base + c}, v{base + c}, v{base + c} row_ror:8 row_mask:0xf bank_mask:0x3")
    for base in (SM, SQ):
        for c in range(6):
            o(f"v_add_f32_dpp v{base + c}, v{base + 6 + c}, v{base + 6 + c} row_ror:8 row_mask:0xf bank_mask:0xc")
    P = 120
    for si, base in enumerate((SM, SQ)):
        for c in range(3):
            o(f"v_add_f32_dpp v{P + 2 * c + si}, v{base + c}, v{base + c} row_shl:4 row_mask:0xf bank_mask:0x5")
    for si, base in enumerate((SM, SQ)):
        for c in range(3):
            o(f"v_add_f32_dpp v{P + 2 * c + si}, v{base + 3 + c}, v{base + 3 + c} row_shr:4 row_mask:0xf bank_mask:0xa")
    order = [P, P + 2, P + 4, P + 1, P + 3, P + 5]
    for perm in ("[1,0,3,2]", "[2,3,0,1]"):
        for v in order:
            o(f"v_add_f32_dpp v{v}, v{v}, v{v} quad_perm:{perm} row_mask:0xf bank_mask:0xf")
    o(f"v_lshrrev_b32 v12, 2, v{V_LANE}")
    o(f"v_mul_u32_u24 v12, 24, v12")
    o(f"s_mul_i32 s3, s{S_WAVE}, 384")
    o(f"s_add_u32 s3, s3, {PART}")
    o(f"v_add_u32 v12, s3, v12")
    o("s_mov_b32 exec_lo, 0x11111111")
    o("s_mov_b32 exec_hi, 0x11111111")
    for c in range(3):
        o(f"ds_write_b64 v12, v[{P + 2 * c}:{P + 2 * c + 1}] offset:{8 * c}")
    o("s_mov_b64 exec, -1")
    o(f"v_mul_u32_u24 v12, 48, v13")
    o(f"v_add_u32 v12, {SCSH}, v12")
    o("s_waitcnt lgkmcnt(0)")
    o("s_barrier")
    if cfg.stamps:
        o("s_memrealtime s[66:67]")
    import math
    k0 = -2.0 * math.log2(math.e) * math.sqrt(2.0 / math.pi)
    k1 = k0 * 0.044715
    f2u = lambda x: struct.unpack("<I", struct.pack("<f", x))[0]
    o(f"v_mov_b32 v14, {f2u(k0):#x}")
    o(f"v_mov_b32 v15, {f2u(k0):#x}")
    o(f"s_mov_b32 s50, {f2u(k1):#x}")
    o(f"s_mov_b32 s51, {f2u(k1):#x}")
    o("s_barrier")
    if cfg.stamps:
        o("s_memrealtime s[68:69]")
    SC, SH = 16, 28
    for i in range(3):
        o(f"ds_read_b128 v[{SC + 4 * i}:{SC + 4 * i + 3}], v12 offset:{16 * i}")
        o(f"ds_read_b128 v[{SH + 4 * i}:{SH + 4 * i + 3}], v12 offset:{192 + 16 * i}")
    o("s_waitcnt lgkmcnt(0)")
    for r in range(3):
        y0 = Y + 12 * r
        T = 40 + 12 * r
        PK = 100 + 8 * r
        pr = lambda b, c: f"v[{b + c}:{b + c + 1}]"
        for c in range(0, 12, 2):
            o(f"v_pk_fma_f32 {pr(y0, c)}, {pr(y0, c)}, {pr(SC, c)}, {pr(SH, c)}")
        for c in range(0, 12, 2):
            o(f"v_pk_mul_f32 {pr(T, c)}, {pr(y0, c)}, {pr(y0, c)}")
        for c in range(0, 12, 2):
            o(f"v_pk_fma_f32 {pr(T, c)}, {pr(T, c)}, s[50:51], v[14:15]")
        for c in range(0, 12, 2):
            o(f"v_pk_mul_f32 {pr(T, c)}, {pr(T, c)}, {pr(y0, c)}")
        for c in range(12):
            o(f"v_exp_f32 v{T + c}, v{T + c}")
        for c in range(0, 12, 2):
            o(f"v_pk_add_f32 {pr(T, c)}, {pr(T, c)}, 1.0 op_sel_hi:[1,0]")
        for c in range(12):
            o(f"v_rcp_f32 v{T + c}, v{T + c}")
        for c in range(0, 12, 2):
            o(f"v_pk_mul_f32 {pr(T, c)}, {pr(T, c)}, {pr(y0, c)}")
        for c in range(0, 12, 2):
            o(f"v_cvt_pk_bf16_f32 v{PK + c // 2}, v{T + c}, v{T + c + 1}")
        o(f"buffer_store_dwordx4 v[{PK}:{PK + 3}], v{V_OUT}, s[{SRD_O}:{SRD_O + 3}], 0 offen offset:{288 * r} {cfg.stflag}")
        o(f"buffer_store_dwordx2 v[{PK + 4}:{PK + 5}], v{V_OUT}, s[{SRD_O}:{SRD_O + 3}], 0 offen offset:{288 * r + 16} {cfg.stflag}")
    if cfg.stamps:
        o("s_memrealtime s[76:77]")
        o("s_waitcnt vmcnt(0)")
        o("s_memrealtime s[70:71]")
        o("s_waitcnt lgkmcnt(0)")
        o("s_sub_u32 s74, s74, s72")
        if cfg.trace:
            o(f"s_mul_i32 s3, s{S_U}, 1280")
            o(f"s_add_u32 s3, s3, {2 * STAMP_OFF + 768}")
            o(f"s_lshr_b32 s47, s{S_WAVE}, 1")
            o("s_lshl_b32 s47, s47, 8")
            o("s_add_u32 s3, s3, s47")
            o(f"v_lshlrev_b32 v1, 2, v{V_LANE}")
            o("v_writelane_b32 v190, s72, 62")
            o("v_writelane_b32 v190, s74, 63")
            o(f"buffer_store_dword v190, v1, s[{SRD_WS}:{SRD_WS + 3}], s3 offen")
        o(f"s_cmp_lg_u32 s{S_WAVE}, 0")
        o("s_cbranch_scc1 L_end")
        if cfg.enc is not None:
            if cfg.encwg is not None:
                o(f"s_cmp_lg_u32 s{S_U}, {cfg.encwg}")
                o("s_cbranch_scc1 L_end")
            sr = (60, 62, 64, 66, 68, 76, 70)[cfg.enc]
            o(f"s_sub_u32 s3, s{sr}, s60")
            if cfg.probe is not None and cfg.probe < 5:
                a, b = ((60, 82), (82, 84), (84, 86), (86, 88), (88, 90))[cfg.probe]
                o(f"s_sub_u32 s3, s{b}, s{a}")
                o("s_mul_i32 s3, s3, 2")
            elif cfg.probe == 5:
                o("v_mov_b32 v2, 0")
                o("global_load_dwordx2 v[4:5], v2, s[16:17] offset:240 sc1")
                o("s_waitcnt vmcnt(0)")
                o("v_not_b32 v5, v5")
                o("v_sub_u32 v4, v4, v5")
                o("s_nop 0")
                o("v_readfirstlane_b32 s3, v4")
                o("s_mul_i32 s3, s3, 2")
            o("s_mul_i32 s3, s3, 10")
            o("s_add_u32 s3, s3, 6000")
            o("s_add_u32 s3, s3, s60")
            o.label("L_enc")
            o("s_memrealtime s[78:79]")
            o("s_waitcnt lgkmcnt(0)")
            o("s_sub_u32 s78, s78, s3")
            o("s_cmp_lt_i32 s78, 0")
            o("s_cbranch_scc1 L_enc")
        o(f"s_mul_i32 s3, s{S_U}, 32")
        o(f"s_add_u32 s3, s3, {STAMP_OFF}")
        o("v_mov_b32 v2, 0")
        o("s_mov_b64 exec, 1")
        for i, s in enumerate((60, 62, 64, 66, 68, 76, 70, 74)):
            o(f"v_mov_b32 v1, s{s}")
            o(f"buffer_store_dword v1, v2, s[{SRD_WS}:{SRD_WS + 3}], s3 offen offset:{4 * i}")
    o.label("L_end")
    o("s_endpgm")
    body = o.text() + "\n" + stubs.text() + "\nL_codeend:\n    s_endpgm"
    head = open("cdna_kernels/" + KNAME + ".s.ref").read().split("; Override launch")[0]
    return f"""{head}; @launch grid=(256,1,1) block=(512,1,1) lds={LDS_BYTES}
.amdgcn_target "amdgcn-amd-amdhsa--gfx950"
.text
.globl {KNAME}_kernel
.p2align 8
.type {KNAME}_kernel,@function
{KNAME}_kernel:
{body}
.section .rodata,"a"
.p2align 6
.amdhsa_kernel {KNAME}_kernel
  .amdhsa_next_free_vgpr 192
  .amdhsa_next_free_sgpr 96
  .amdhsa_accum_offset 192
  .amdhsa_group_segment_fixed_size 0
  .amdhsa_kernarg_size 64
  .amdhsa_user_sgpr_count 2
  .amdhsa_user_sgpr_kernarg_segment_ptr 1
  .amdhsa_system_sgpr_workgroup_id_x 1
  .amdhsa_float_denorm_mode_32 3
.end_amdhsa_kernel
"""


if __name__ == "__main__":
    out = sys.argv[1]
    kw = json.loads(sys.argv[2]) if len(sys.argv) > 2 else {}
    open(out, "w").write(generate(Cfg(**kw)))
```

```python
import sys, json

KNAME = "standalone__self_sup_conv_stem_hubert__speech"
L = 7985
NT = 42
XBATCH = 4608000
WBYTES = 1285632

XREG = 13 * 1024
NXS = 4
WBASE = NXS * XREG
WSLOT = 3072
NWS = 16
FLAG = WBASE + 2 * NWS * WSLOT
READY = FLAG
CONS = FLAG + 1024
PART = CONS + 1024
SCSH = PART + 1536
LDS_END = SCSH + 384
LDS_BYTES = 163840
assert LDS_END <= LDS_BYTES

REC = 384
GRP_STRIDE = 48 * REC
STAMP_OFF = 0x1000000

V_WB, V_RDY, V_CONSA, V_F, V_C, V_T0, V_T1, V_LANE, V_OUT, V_EX = 2, 3, 4, 5, 6, 7, 8, 9, 10, 11
V_XA = 192
ACC, BF, AF = 16, 88, 100
S_WAVE, S_T, S_B, S_TB, S_U = 40, 41, 42, 43, 44
S_F = 48
SRD_X, SRD_W, SRD_O, SRD_WS, SRD_DBG = 20, 24, 28, 32, 36


def lam(i):
    return (4 + 5 * i) % 9


def runs_for(kh):
    runs = []
    for s in range(9):
        if s < 5:
            cut, n = 8, 16
        else:
            cut, n = (8 if s % 2 else 7), 15
        runs.append((s, 0, cut) if kh == 0 else (s, cut, n - cut))
    return runs


class Cfg:
    stamps = False
    snake = True
    code_pf = True
    w_mall_pf = True
    w_l2_pf = True
    wdepth = 3
    fine = 12
    flag_lead = 7
    xlead = 9
    pf_ahead = 0
    init_reg = 5
    w0_pf = True
    wsleep = 1
    xsleep = 2
    span = 2
    mspan = 2
    cmp_lead = 1
    repub = True
    nochk = False
    prio = True
    safe = True
    enc = None
    encwg = None
    probe = None
    trace = False
    stflag = ''

    def __init__(self, **kw):
        for k, v in kw.items():
            assert hasattr(Cfg, k), k
            setattr(self, k, v)


def bail(o, cfg, limit=400000):
    if cfg.safe:
        o("s_add_u32 s80, s80, 1")
        o(f"s_cmp_gt_u32 s80, {limit}")
        o("s_cbranch_scc1 L_end")


class Out:
    def __init__(self):
        self.l = []

    def __call__(self, s):
        self.l.append("    " + s)

    def label(self, s):
        self.l.append(s + ":")

    def raw(self, s):
        self.l.append(s)

    def text(self):
        return "\n".join(self.l)


def a_offset(s, rho):
    par, pi = rho & 1, rho >> 1
    hh = 9 * par + s
    h = hh & 1
    reg = s if h == 1 else s + 1
    assert lam(reg) == hh >> 1
    return reg, (pi + 4 * h) & 7, (reg % NXS) * XREG + 128 * pi


def compute_items(cfg, kh):
    runs = runs_for(kh)
    items = []

    def rdA(run, phi):
        s, p0, n = runs[run]
        reg, c, off = a_offset(s, p0 + phi)
        return ('rdA', phi, c, off, ('X', reg))

    def rdB(i, t):
        return [('rdB', t, h, (i % NWS) * WSLOT + 1536 * h + 8 * t, ('W', kh, i)) for h in range(2)]

    items.append(('seg', -1))
    items += rdB(0, 0)
    for phi in range(6):
        items.append(rdA(0, phi))
    items += rdB(0, 1)
    i = 0
    for rn, (s, p0, n) in enumerate(runs):
        for sg in range(n):
            al = []
            if sg < 4:
                al += [rdA(rn, phi) for phi in (6 + 2 * sg, 7 + 2 * sg) if phi <= n + 4]
            if rn + 1 < len(runs) and sg >= n - 3:
                q = sg - (n - 3)
                al += [rdA(rn + 1, 2 * q), rdA(rn + 1, 2 * q + 1)]
            assert len(al) <= 3
            for t in range(3):
                order = list(range(6))
                if cfg.snake and t == 1:
                    order = order[::-1]
                if t == 0:
                    extra = rdB(i, 2)
                else:
                    extra = rdB(i + 1, t - 1) if i + 1 < 70 else []
                if t == 1:
                    items.append(('seg', i))
                if t >= 1 and al:
                    extra = extra + [al.pop(0)]
                    if t == 2:
                        extra += al
                        al = []
                for k, r in enumerate(order):
                    items.append(('mfma', r, t, sg + r, i == 0))
                    if k < len(extra):
                        items.append(extra[k])
            i += 1
    assert i == 70
    return items


class Plan:
    pass


def plan_sync(cfg):
    P = Plan()
    P.steps = [[(s, p0 + k) for (s, p0, n) in runs_for(kh) for k in range(n)] for kh in range(2)]
    P.items = [compute_items(cfg, kh) for kh in range(2)]
    first, last = {}, {}
    for kh in range(2):
        seg = None
        for it in P.items[kh]:
            if it[0] == 'seg':
                seg = it[1]
            elif it[0] in ('rdA', 'rdB'):
                buf = it[-1]
                first[buf] = min(first.get(buf, 99), seg)
                last[buf] = max(last.get(buf, -9), seg)
                if buf[0] == 'W':
                    assert buf[2] <= seg + 1
    P.checks = {}
    sg = 0
    while sg < 70:
        span = 1 if (sg < cfg.fine or sg >= 68) else cfg.span
        if sg + span > 68 and sg < 68:
            span = 68 - sg
        P.checks[sg] = sg + span - 1 + 2
        sg += span
    P.marks = list(range(1, 70, cfg.mspan))
    mark_after = lambda seg: min(m for m in P.marks if m > seg)
    P.wneed = [0 if i < NWS else mark_after(max(last[('W', kh, i - NWS)] for kh in range(2))) for i in range(70)]
    P.xfree = [0 if r < NXS else mark_after(last[('X', r - NXS)]) for r in range(10)]
    P.xlevel = [first[('X', r + 1)] + 1 for r in range(9)] + [70]
    P.exneed = mark_after(max(last[('W', kh, i)] for kh in range(2) for i in range(54, 60)))
    P.xgate = []
    for r in range(10):
        g = P.xfree[r]
        if r >= 3:
            want = first[('X', r)] - cfg.xlead
            g = max([g] + [m for m in P.marks if m <= want])
        P.xgate.append(g)
    for sg, lv in P.checks.items():
        for i in range(min(lv, 70)):
            assert P.wneed[i] <= sg, (sg, i)
        for r in range(2, 10):
            if P.xlevel[r - 1] < lv:
                assert P.xgate[r] <= sg, (sg, r)
        if lv > 70:
            assert P.exneed <= sg
    return P


def emit_compute(o, stubs, cfg, kh, P):
    items = P.items[kh]
    q = []

    def wait_for(tags):
        idx = -1
        for n, tg in enumerate(q):
            if tg in tags:
                idx = n
        if idx >= 0:
            left = len(q) - 1 - idx
            o(f"s_waitcnt lgkmcnt({min(left, 15)})")
            del q[:len(q) - min(left, 15)]

    cur = None
    cnt = 0
    for it in items:
        if it[0] == 'seg':
            cur = it[1]
            cnt = 0
            if cur in P.marks:
                o(f"ds_write_b32 v{V_CONSA}, v{V_C}")
                q.append('cons')
            if cur in P.checks:
                lab = f"L_chk{kh}_{cur}"
                o.label(lab)
                if not (cfg.nochk and 14 < cur < 68):
                    o(f"s_cbranch_vccnz L_spin{kh}_{cur}")
                stubs.label(f"L_spin{kh}_{cur}")
                stubs(f"ds_read_b32 v{V_F}, v{V_RDY}")
                bail(stubs, cfg)
                if cfg.trace:
                    stubs(f"v_writelane_b32 v190, s80, {min(cur, 60)}")
                stubs("s_waitcnt lgkmcnt(0)")
                stubs(f"v_cmp_gt_u32 vcc, {P.checks[cur]}, v{V_F}")
                stubs(f"s_branch {lab}")
        elif it[0] == 'rdA':
            _, slot, c, off, buf = it
            r = AF + 4 * slot
            o(f"ds_read_b128 v[{r}:{r + 3}], v{V_XA + c} offset:{off}")
            q.append(('A', slot))
        elif it[0] == 'rdB':
            _, t, h, off, buf = it
            r = BF + 4 * t + 2 * h
            o(f"ds_read_b64_tr_b16 v[{r}:{r + 1}], v{V_WB} offset:{off}")
            q.append(('B', t))
        else:
            _, r, t, slot, first = it
            wait_for({('A', slot), ('B', t)})
            d = ACC + 12 * r + 4 * t
            a = AF + 4 * slot
            w = BF + 4 * t
            c = "0" if first else f"v[{d}:{d + 3}]"
            o(f"v_mfma_f32_16x16x32_bf16 v[{d}:{d + 3}], v[{w}:{w + 3}], v[{a}:{a + 3}], {c}")
            cnt += 1
            seglen = 6 if cur == -1 else 18
            need_flag = (cur + 1) in P.checks
            if need_flag and cnt == max(seglen - cfg.flag_lead, 1):
                o(f"ds_read_b32 v{V_F}, v{V_RDY}")
                q.append('flag')
            if need_flag and cnt == seglen - cfg.cmp_lead:
                wait_for({'flag'})
                o(f"v_cmp_gt_u32 vcc, {P.checks[cur + 1]}, v{V_F}")
            if (cur + 1) in P.marks and cnt == seglen - 2:
                o(f"v_mov_b32 v{V_C}, {cur + 1}")


LV_X, LV_W, LV_RDY, LV_CA, LV_C, LV_R, LV_PF, LV_D = 1, 2, 5, 6, 7, 8, 12, 13
S_OFF, S_PART = 50, 51


def loader_common(o, level0):
    o(f"s_lshl_b32 s3, s{S_WAVE}, 8")
    o(f"s_add_u32 s3, s3, {READY - 1024}")
    o(f"v_lshl_add_u32 v{LV_RDY}, v{V_LANE}, 2, s3")
    o(f"v_mov_b32 v{LV_R}, {level0}")
    o(f"ds_write_b32 v{LV_RDY}, v{LV_R}")
    o(f"v_and_b32 v14, 3, v{V_LANE}")
    o(f"v_mul_u32_u24 v14, 260, v14")
    o(f"v_add_u32 v{LV_CA}, {CONS}, v14")


def publish(o, lvl):
    o(f"v_mov_b32 v{LV_R}, {lvl}")
    o(f"ds_write_b32 v{LV_RDY}, v{LV_R}")


def emit_wloader(o, stubs, cfg, P):
    D = cfg.wdepth
    have = 0
    for i in range(1, 70):
        if P.wneed[i] > have:
            have = P.wneed[i]
            o.label(f"L_wchk{i}")
            o("s_waitcnt lgkmcnt(0)")
            o(f"v_cmp_gt_u32 vcc, {have}, v{LV_C}")
            o(f"s_cbranch_vccnz L_wspin{i}")
            stubs.label(f"L_wspin{i}")
            stubs("s_waitcnt vmcnt(0)")
            publish(stubs, i)
            if cfg.repub:
                stubs(f"s_sleep {cfg.wsleep}")
                stubs(f"ds_read_b32 v{LV_C}, v{LV_CA}")
                bail(stubs, cfg)
                stubs(f"s_branch L_wchk{i}")
            else:
                stubs.label(f"L_wspin{i}b")
                stubs(f"ds_read_b32 v{LV_C}, v{LV_CA}")
                bail(stubs, cfg)
                stubs("s_waitcnt lgkmcnt(0)")
                stubs(f"v_cmp_gt_u32 vcc, {have}, v{LV_C}")
                stubs(f"s_cbranch_vccz L_wgo{i}")
                stubs(f"s_sleep {cfg.wsleep}")
                stubs(f"s_branch L_wspin{i}b")
                o.label(f"L_wgo{i}")
        for kh in range(2):
            s, p = P.steps[kh][i]
            o(f"s_add_u32 m0, s{S_PART}, {WBASE + (kh * NWS + i % NWS) * WSLOT}")
            o(f"s_mov_b32 s{S_OFF}, {(288 * p + 32 * s) * 288}")
            o(f"buffer_load_dwordx4 v{LV_W}, s[{SRD_W}:{SRD_W + 3}], s{S_OFF} offen lds")
        if i + 1 < 70 and P.wneed[i + 1] > have:
            o(f"ds_read_b32 v{LV_C}, v{LV_CA}")
        if i == D:
            o(f"s_waitcnt vmcnt({2 * D}) lgkmcnt(0)")
            o("s_barrier")
        elif i > D:
            o(f"s_waitcnt vmcnt({2 * D})")
            publish(o, i + 1 - D)
    for d in range(D - 1, 0, -1):
        o(f"s_waitcnt vmcnt({2 * d})")
        publish(o, 70 - d)
    o("s_waitcnt vmcnt(0)")
    publish(o, 71)


def emit_gate(o, cfg, name, mark):
    o.label(name)
    o(f"ds_read_b32 v{LV_C}, v{LV_CA}")
    bail(o, cfg)
    o("s_waitcnt lgkmcnt(0)")
    o(f"v_cmp_gt_u32 vcc, {mark}, v{LV_C}")
    o(f"s_cbranch_vccz {name}_ok")
    o(f"s_sleep {cfg.xsleep}")
    o(f"s_branch {name}")
    o.label(name + "_ok")


def emit_xloader(o, cfg, P):
    for reg in range(2, 10):
        if P.xgate[reg] > 0:
            emit_gate(o, cfg, f"L_xg{reg}", P.xgate[reg])
        for j in range(13):
            jj = j % 4
            if jj == 0:
                o(f"s_mov_b32 m0, {(reg % NXS) * XREG + j * 1024}")
            o(f"s_mov_b32 s{S_OFF}, {lam(reg) * 128 + j * 9216 - jj * 1024}")
            o(f"buffer_load_dwordx4 v{LV_X}, s[{SRD_X}:{SRD_X + 3}], s{S_OFF} offen offset:{jj * 1024} lds")
        extra = 0
        ph = reg - 1 + cfg.pf_ahead
        if cfg.w_l2_pf and ph < 9:
            o(f"s_mov_b32 s{S_OFF}, {32 * ph * 288}")
            o(f"buffer_load_dword v{LV_D}, v{LV_PF}, s[{SRD_W}:{SRD_W + 3}], s{S_OFF} offen")
            extra += 1
        if reg == cfg.init_reg:
            o("s_mov_b64 exec, 0xffffff")
            o(f"buffer_store_dwordx4 v[16:19], v3, s[{SRD_WS}:{SRD_WS + 3}], s47 offen sc1")
            o("s_mov_b64 exec, -1")
            extra += 1
        o(f"s_waitcnt vmcnt({extra})")
        publish(o, P.xlevel[reg])
        if reg == cfg.init_reg:
            o("s_mov_b64 exec, 1")
            o("s_waitcnt vmcnt(0)")
            o(f"buffer_atomic_add v20, v21, s[{SRD_DBG}:{SRD_DBG + 3}], s46 offen sc1")
            o("s_mov_b64 exec, -1")
    emit_gate(o, cfg, "L_xgex", P.exneed)
    publish(o, 71)
    o("s_waitcnt vmcnt(0) lgkmcnt(0)")


def srd(o, d, lo, hi, size):
    o(f"s_mov_b32 s{d}, {lo}")
    o(f"s_mov_b32 s{d + 1}, {hi}")
    o(f"s_mov_b32 s{d + 2}, {size}")
    o(f"s_mov_b32 s{d + 3}, 0x20000")


def generate(cfg):
    P = plan_sync(cfg)
    o = Out()
    stubs = Out()
    if cfg.stamps:
        o("s_memrealtime s[60:61]")
    if cfg.trace:
        o("v_mov_b32 v190, 0")
    o("s_load_dwordx16 s[4:19], s[0:1], 0")
    o("v_lshrrev_b32 v1, 6, v0")
    o("s_and_b32 s3, s2, 7")
    o("s_lshl_b32 s3, s3, 5")
    o(f"v_readfirstlane_b32 s{S_WAVE}, v1")
    o(f"s_lshr_b32 s{S_U}, s2, 3")
    o(f"s_cmp_ge_u32 s{S_U}, 32")
    o("s_cbranch_scc1 L_end")
    o(f"s_add_u32 s{S_U}, s{S_U}, s3")
    o(f"s_cmpk_ge_u32 s{S_U}, 252")
    o("s_cbranch_scc1 L_end")
    o(f"v_and_b32 v{V_LANE}, 63, v0")
    o(f"s_mul_hi_u32 s{S_TB}, s{S_U}, 0x55555556")
    o(f"v_lshrrev_b32 v15, 3, v{V_LANE}")
    o(f"s_mul_i32 s3, s{S_TB}, 3")
    o(f"v_and_b32 v16, 6, v15")
    o(f"s_sub_u32 s{S_T}, s{S_U}, s3")
    o(f"v_and_b32 v14, 7, v{V_LANE}")
    o(f"s_cmp_ge_u32 s{S_TB}, {NT}")
    o(f"s_cselect_b32 s{S_B}, 1, 0")
    o(f"s_cselect_b32 s3, {NT}, 0")
    o(f"s_cselect_b32 s45, {XBATCH}, 0")
    o(f"v_xor_b32 v14, v14, v16")
    o(f"s_sub_u32 s{S_TB}, s{S_TB}, s3")
    o(f"v_mul_u32_u24 v15, 1152, v15")
    o(f"s_mul_i32 s46, s{S_TB}, {192 * 576}")
    o(f"v_lshl_add_u32 v{LV_X}, v14, 4, v15")
    o(f"s_add_u32 s45, s45, s46")
    o(f"s_sub_u32 s{SRD_X + 2}, {XBATCH - 288}, s46")
    o(f"s_mov_b32 s{SRD_X + 3}, 0x20000")
    o(f"s_mov_b32 s{SRD_W + 2}, {WBYTES}")
    o(f"s_mov_b32 s{SRD_W + 3}, 0x20000")
    o(f"s_mul_i32 s{S_OFF}, s{S_WAVE}, 9216")
    o(f"s_lshl_b32 s{S_PART}, s{S_WAVE}, 10")
    o(f"s_add_u32 s52, s{S_OFF}, 512")
    o("s_mov_b32 s80, 0")
    o(f"v_subrev_u32 v14, 320, v0")
    o(f"v_mul_u32_u24 v15, 171, v14")
    o(f"v_lshrrev_b32 v15, 10, v15")
    o(f"v_mul_u32_u24 v16, 6, v15")
    o(f"v_sub_u32 v14, v14, v16")
    o(f"v_and_b32 v16, 12, v15")
    o(f"v_add_u32 v16, v16, v15")
    o(f"v_lshrrev_b32 v15, 4, v15")
    o(f"v_mul_u32_u24 v15, 12, v15")
    o(f"v_sub_u32 v15, v16, v15")
    o(f"s_mul_i32 s3, s{S_T}, 6")
    o(f"v_mul_u32_u24 v15, 18, v15")
    o(f"v_add3_u32 v15, v15, v14, s3")
    o(f"v_lshlrev_b32 v{LV_W}, 4, v15")
    o(f"s_mov_b32 m0, s{S_PART}")
    o(f"s_cmp_lt_u32 s{S_WAVE}, 4")
    o("s_cbranch_scc1 L_compute")
    o(f"s_cmp_eq_u32 s{S_WAVE}, 4")
    o("s_cbranch_scc1 L_xloader")
    o("s_branch L_wstart")
    xl = lambda so: o(f"buffer_load_dwordx4 v{LV_X}, s[{SRD_X}:{SRD_X + 3}], s{so} offen lds")

    def first_loads(wrole):
        o("s_waitcnt lgkmcnt(0)")
        o(f"s_add_u32 s{SRD_X}, s4, s45")
        o(f"s_addc_u32 s{SRD_X + 1}, s5, 0")
        xl(52)
        o(f"s_add_u32 m0, s{S_PART}, {XREG}")
        if not wrole:
            o(f"s_add_u32 s52, s52, {8 * 9216}")
            xl(S_OFF)
            o(f"s_add_u32 m0, s{S_PART}, 8192")
            o(f"s_add_u32 s{S_OFF}, s{S_OFF}, {8 * 9216}")
            xl(52)
            o(f"s_add_u32 m0, s{S_PART}, {XREG + 8192}")
            o(f"s_mov_b64 s[{SRD_W}:{SRD_W + 1}], s[6:7]")
            xl(S_OFF)
        else:
            o(f"s_sub_u32 s{S_PART}, s{S_PART}, {5 * 1024}")
            xl(S_OFF)
            o(f"s_add_u32 m0, s{S_PART}, {WBASE}")
            o(f"s_mov_b64 s[{SRD_W}:{SRD_W + 1}], s[6:7]")
            o(f"buffer_load_dwordx4 v{LV_W}, s[{SRD_W}:{SRD_W + 3}], 0 offen lds")
            o(f"s_add_u32 m0, s{S_PART}, {WBASE + NWS * WSLOT}")
            o(f"s_mov_b32 s{S_OFF}, {P.steps[1][0][1] * 288 * 288}")
            o(f"buffer_load_dwordx4 v{LV_W}, s[{SRD_W}:{SRD_W + 3}], s{S_OFF} offen lds")

    o.raw(".p2align 9")
    o.label("L_wstart")
    first_loads(True)

    loader_common(o, 1)
    emit_wloader(o, stubs, cfg, P)
    o(f"s_sub_u32 s45, s{S_WAVE}, 5")
    o(f"s_mul_i32 s3, s{S_B}, 3")
    o(f"s_add_u32 s46, s3, s{S_T}")
    o(f"s_mul_i32 s47, s46, {GRP_STRIDE}")
    o(f"s_lshl_b32 s46, s46, 5")
    o(f"v_and_b32 v2, 7, v{V_LANE}")
    o(f"s_mul_i32 s3, s{S_T}, 96")
    o(f"s_lshl_b32 s49, s45, 5")
    o(f"s_add_u32 s3, s3, s49")
    o(f"v_lshl_add_u32 v3, v2, 2, s3")
    o(f"v_mov_b32 v12, 0")
    srd(o, SRD_WS, "s18", "s19", "0x10000000")
    srd(o, SRD_DBG, "s16", "s17", 256)
    o("s_waitcnt lgkmcnt(0)")
    o("global_load_dword v6, v3, s[8:9]")
    o("global_load_dword v7, v3, s[10:11]")
    o("global_load_dword v8, v3, s[12:13]")
    o.label("L_h_cnt")
    bail(o, cfg)
    o(f"buffer_load_dword v5, v12, s[{SRD_DBG}:{SRD_DBG + 3}], s46 offen sc1")
    o("s_waitcnt vmcnt(0)")
    o(f"v_cmp_gt_u32 vcc, {NT}, v5")
    o("s_cbranch_vccnz L_h_cnt")
    o(f"v_lshrrev_b32 v4, 3, v{V_LANE}")
    o(f"v_mul_u32_u24 v4, {REC}, v4")
    o(f"v_lshl_add_u32 v4, v2, 4, v4")
    o(f"s_lshl_b32 s3, s45, 7")
    o(f"s_add_u32 s54, s47, s3")
    for i in range(1, 6):
        o(f"s_add_u32 s{54 + i}, s54, {8 * REC * i}")
    for i in range(4):
        o(f"v_mov_b32 v{36 + i}, 0")
    o(f"v_lshlrev_b32 v40, 16, v6")
    o(f"v_and_b32 v41, 0xffff0000, v6")
    o(f"v_lshlrev_b32 v42, 16, v7")
    o(f"v_and_b32 v43, 0xffff0000, v7")
    o(f"v_lshlrev_b32 v44, 16, v8")
    o(f"v_and_b32 v45, 0xffff0000, v8")
    o(f"s_lshl_b32 s3, s45, 6")
    o(f"s_add_u32 s3, s3, {SCSH}")
    o(f"v_lshl_add_u32 v46, v2, 3, s3")
    o("s_barrier")
    o("s_barrier")
    o.label("L_h_poll")
    bail(o, cfg)
    for i in range(5):
        o(f"buffer_load_dwordx4 v[{16 + 4 * i}:{19 + 4 * i}], v4, s[{SRD_WS}:{SRD_WS + 3}], s{54 + i} offen sc1")
    o("s_mov_b64 exec, 0xffff")
    o(f"buffer_load_dwordx4 v[36:39], v4, s[{SRD_WS}:{SRD_WS + 3}], s59 offen sc1")
    o("s_mov_b64 exec, -1")
    o("s_waitcnt vmcnt(5)")
    o("v_max3_u32 v5, v16, v17, v18")
    prev = 19
    for i in range(1, 6):
        o(f"s_waitcnt vmcnt({5 - i})")
        b0 = 16 + 4 * i
        o(f"v_max3_u32 v5, v5, v{prev}, v{b0}")
        o(f"v_max3_u32 v5, v5, v{b0 + 1}, v{b0 + 2}")
        prev = b0 + 3
    o(f"v_max_u32 v5, v5, v{prev}")
    o("v_cmp_eq_u32 vcc, -1, v5")
    o("s_cbranch_vccnz L_h_poll")
    for a, b in ((16, 20), (24, 28), (32, 36), (16, 24), (16, 32)):
        o(f"v_pk_add_f32 v[{a}:{a + 1}], v[{a}:{a + 1}], v[{b}:{b + 1}]")
        o(f"v_pk_add_f32 v[{a + 2}:{a + 3}], v[{a + 2}:{a + 3}], v[{b + 2}:{b + 3}]")
    o("s_nop 1")
    for i in range(4):
        o(f"v_add_f32_dpp v{16 + i}, v{16 + i}, v{16 + i} row_ror:8 row_mask:0xf bank_mask:0xf")
    for i in range(4):
        o(f"v_mov_b32 v{20 + i}, v{16 + i}")
    o("s_nop 1")
    for i in range(4):
        o(f"v_permlane16_swap_b32 v{16 + i}, v{20 + i}")
    for i in range(4):
        o(f"v_add_f32 v{16 + i}, v{16 + i}, v{20 + i}")
    for i in range(4):
        o(f"v_mov_b32 v{20 + i}, v{16 + i}")
    o("s_nop 1")
    for i in range(4):
        o(f"v_permlane32_swap_b32 v{16 + i}, v{20 + i}")
    import struct
    invl = struct.unpack("<I", struct.pack("<f", 1.0 / L))[0]
    eps = struct.unpack("<I", struct.pack("<f", 1e-5))[0]
    for i in range(4):
        o(f"v_add_f32 v{16 + i}, v{16 + i}, v{20 + i}")
    for i in range(4):
        o(f"v_mul_f32 v{16 + i}, {invl:#x}, v{16 + i}")
    o("v_fma_f32 v17, -v16, v16, v17")
    o("v_fma_f32 v19, -v18, v18, v19")
    o("v_max_f32 v17, 0, v17")
    o("v_max_f32 v19, 0, v19")
    o(f"v_add_f32 v17, {eps:#x}, v17")
    o(f"v_add_f32 v19, {eps:#x}, v19")
    o("v_rsq_f32 v17, v17")
    o("v_rsq_f32 v19, v19")
    o("v_add_f32 v16, v16, v40")
    o("v_add_f32 v18, v18, v41")
    o("v_sub_f32 v16, v40, v16")
    o("v_sub_f32 v18, v41, v18")
    o("v_mul_f32 v20, v42, v17")
    o("v_mul_f32 v21, v43, v19")
    o("v_fma_f32 v22, v16, v20, v44")
    o("v_fma_f32 v23, v18, v21, v45")
    o("s_mov_b64 exec, 0xff")
    o("ds_write_b64 v46, v[20:21]")
    o("ds_write_b64 v46, v[22:23] offset:192")
    o("s_waitcnt lgkmcnt(0)")
    o("s_barrier")
    o("s_endpgm")

    o.label("L_xloader")
    first_loads(False)
    o(f"s_and_b32 s3, s{S_U}, 31")
    o(f"s_lshr_b32 s45, s3, 1")
    o(f"s_mul_i32 s45, s45, {288 * 288}")
    o(f"s_and_b32 s46, s3, 1")
    o(f"s_mul_i32 s46, s46, {36 * 128}")
    o(f"s_add_u32 s45, s46, s45")
    o(f"v_min_u32 v14, 35, v{V_LANE}")
    o(f"v_lshl_add_u32 v{LV_PF}, v14, 7, s45")
    extra = 0
    if cfg.w0_pf:
        o(f"buffer_load_dword v{LV_D}, v{LV_PF}, s[{SRD_W}:{SRD_W + 3}], 0 offen")
        extra += 1
    if cfg.code_pf:
        o("s_getpc_b64 s[54:55]")
        o.label("L_pcref")
        o(f"s_sub_u32 s54, s54, L_pcref-{KNAME}_kernel")
        o("s_subb_u32 s55, s55, 0")
        o(f"v_lshl_add_u32 v4, v{V_LANE}, 5, s3")
        o(f"v_lshlrev_b32 v4, 7, v4")
        o(f"v_min_u32 v4, L_codeend-{KNAME}_kernel-4, v4")
        o("global_load_dword v22, v4, s[54:55]")
        extra += 1
    loader_common(o, P.xlevel[1])
    srd(o, SRD_WS, "s18", "s19", "0x10000000")
    srd(o, SRD_DBG, "s16", "s17", 256)
    o(f"s_mul_i32 s3, s{S_B}, 3")
    o(f"s_add_u32 s46, s3, s{S_T}")
    o(f"s_mul_i32 s47, s46, {GRP_STRIDE}")
    o(f"s_mul_i32 s3, s{S_TB}, {REC}")
    o(f"s_add_u32 s47, s47, s3")
    o(f"s_lshl_b32 s46, s46, 5")
    o(f"v_lshlrev_b32 v3, 4, v{V_LANE}")
    for i in range(4):
        o(f"v_mov_b32 v{16 + i}, -1")
    o("v_mov_b32 v20, 1")
    o("v_mov_b32 v21, 0")
    o(f"s_waitcnt vmcnt({extra}) lgkmcnt(0)")
    o("s_barrier")
    emit_xloader(o, cfg, P)
    o(f"v_add_u32 v2, {PART}, v3")
    o("s_barrier")
    o("s_mov_b64 exec, 0xffffff")
    o("s_barrier")
    for w in range(4):
        o(f"ds_read_b128 v[{16 + 4 * w}:{19 + 4 * w}], v2 offset:{384 * w}")
    o("s_waitcnt lgkmcnt(2)")
    o("v_pk_add_f32 v[16:17], v[16:17], v[20:21]")
    o("v_pk_add_f32 v[18:19], v[18:19], v[22:23]")
    o("s_waitcnt lgkmcnt(0)")
    o("v_pk_add_f32 v[24:25], v[24:25], v[28:29]")
    o("v_pk_add_f32 v[26:27], v[26:27], v[30:31]")
    o("v_pk_add_f32 v[16:17], v[16:17], v[24:25]")
    o("v_pk_add_f32 v[18:19], v[18:19], v[26:27]")
    for i in range(4):
        o(f"v_min_u32 v{16 + i}, -2, v{16 + i}")
    o(f"buffer_store_dwordx4 v[16:19], v3, s[{SRD_WS}:{SRD_WS + 3}], s47 offen sc1")
    o("s_mov_b64 exec, -1")
    o("s_barrier")
    o("s_endpgm")

    o.label("L_compute")
    first_loads(False)
    if cfg.prio:
        o("s_setprio 2")
    o(f"v_and_b32 v12, 15, v{V_LANE}")
    o(f"v_lshrrev_b32 v13, 4, v{V_LANE}")
    o(f"s_and_b32 s45, s{S_WAVE}, 1")
    o(f"s_lshr_b32 s46, s{S_WAVE}, 1")
    o(f"s_lshl_b32 s3, s{S_WAVE}, 8")
    o(f"s_add_u32 s3, s3, {CONS}")
    o(f"v_lshl_add_u32 v{V_CONSA}, v{V_LANE}, 2, s3")
    o(f"v_mov_b32 v{V_C}, 0")
    o(f"ds_write_b32 v{V_CONSA}, v{V_C}")
    o(f"v_mul_u32_u24 v14, 3, v12")
    o(f"s_mul_i32 s3, s45, {48 * 128}")
    o(f"v_lshl_add_u32 v15, v14, 7, s3")
    for c in range(8):
        o(f"v_add_u32 v16, {c}, v14")
        o(f"v_and_b32 v16, 6, v16")
        o(f"v_xor_b32 v16, v16, v13")
        o(f"v_lshl_add_u32 v{V_XA + c}, v16, 4, v15")
    o(f"s_mul_i32 s3, s46, {NWS * WSLOT}")
    o(f"s_add_u32 s3, s3, {WBASE}")
    o(f"v_mul_u32_u24 v{V_WB}, 24, v{V_LANE}")
    o(f"v_add_u32 v{V_WB}, s3, v{V_WB}")
    o(f"v_and_b32 v14, 3, v{V_LANE}")
    o(f"v_mul_u32_u24 v14, 260, v14")
    o(f"v_add_u32 v{V_RDY}, {READY}, v14")
    o(f"s_mul_i32 s3, s45, 96")
    o(f"s_mul_i32 s47, s46, 3")
    o(f"s_add_u32 s3, s3, s47")
    o(f"v_mul_u32_u24 v14, 6, v12")
    o(f"v_add_u32 v14, s3, v14")
    o(f"s_mul_i32 s47, s{S_TB}, 192")
    o(f"s_sub_u32 s47, {L}, s47")
    for r in range(3):
        o(f"v_add_u32 v15, {r}, v14")
        o(f"v_cmp_gt_u32 s[{54 + 2 * r}:{55 + 2 * r}], s47, v15")
    o(f"v_mul_u32_u24 v14, 288, v14")
    o(f"v_mul_u32_u24 v15, 24, v13")
    o(f"s_mul_i32 s3, s{S_T}, 96")
    o(f"v_add3_u32 v{V_OUT}, v14, v15, s3")
    o(f"s_mul_i32 s3, s45, 9216")
    o(f"s_add_u32 s3, s3, {WBASE + 6 * WSLOT}")
    o(f"v_lshl_add_u32 v{V_EX}, v{V_LANE}, 4, s3")
    o(f"s_mul_i32 s3, s{S_B}, {L}")
    o(f"s_mul_i32 s49, s{S_TB}, 192")
    o(f"s_add_u32 s3, s3, s49")
    o(f"s_mul_i32 s3, s3, 288")
    o(f"s_mul_i32 s47, s47, 288")
    o(f"s_add_u32 s{SRD_O}, s14, s3")
    o(f"s_addc_u32 s{SRD_O + 1}, s15, 0")
    o(f"s_mov_b32 s{SRD_O + 2}, s47")
    o(f"s_mov_b32 s{SRD_O + 3}, 0x20000")
    if cfg.stamps:
        srd(o, SRD_WS, "s18", "s19", "0x10000000")
    o("s_cmp_eq_u32 s46, 1")
    o("s_cbranch_scc1 L_kh1")
    Y = 152
    for kh in range(2):
        o.label(f"L_kh{kh}")
        o("s_waitcnt vmcnt(0) lgkmcnt(0)")
        o("s_barrier")
        if cfg.stamps:
            o("s_memrealtime s[62:63]")
            o("s_memtime s[72:73]")
            o("s_waitcnt lgkmcnt(0)")
        emit_compute(o, stubs, cfg, kh, P)
        if cfg.stamps:
            o("s_memrealtime s[64:65]")
            o("s_memtime s[74:75]")
        send = ACC + 36 * (1 - kh)
        keep = ACC + 36 * kh
        o("s_nop 7")
        for i in range(9):
            o(f"ds_write_b128 v{V_EX}, v[{send + 4 * i}:{send + 4 * i + 3}] offset:{kh * NWS * WSLOT + 1024 * i}")
        o("s_waitcnt lgkmcnt(0)")
        o("s_barrier")
        for i in range(9):
            o(f"ds_read_b128 v[{Y + 4 * i}:{Y + 4 * i + 3}], v{V_EX} offset:{(1 - kh) * NWS * WSLOT + 1024 * i}")
        for i in range(24):
            o(f"v_mov_b32 v{BF + i}, 0")
        for i in range(9):
            o(f"s_waitcnt lgkmcnt({8 - i})")
            for hh in range(2):
                a = Y + 4 * i + 2 * hh
                b = keep + 4 * i + 2 * hh
                o(f"v_pk_add_f32 v[{a}:{a + 1}], v[{a}:{a + 1}], v[{b}:{b + 1}]")
        if kh == 0:
            o("s_branch L_epi")
    o.label("L_epi")
    SM, SQ = BF, BF + 12
    for r in range(3):
        o(f"s_mov_b64 exec, s[{54 + 2 * r}:{55 + 2 * r}]")
        for c in range(0, 12, 2):
            y = Y + 12 * r + c
            o(f"v_pk_add_f32 v[{SM + c}:{SM + c + 1}], v[{SM + c}:{SM + c + 1}], v[{y}:{y + 1}]")
            o(f"v_pk_fma_f32 v[{SQ + c}:{SQ + c + 1}], v[{y}:{y + 1}], v[{y}:{y + 1}], v[{SQ + c}:{SQ + c + 1}]")
    o("s_mov_b64 exec, -1")
    o("s_nop 1")
    for base in (SM, SQ):
        for c in range(6):
            o(f"v_add_f32_dpp v{base + c}, v{base + c}, v{base + c} row_ror:8 row_mask:0xf bank_mask:0x3")
    for base in (SM, SQ):
        for c in range(6):
            o(f"v_add_f32_dpp v{base + c}, v{base + 6 + c}, v{base + 6 + c} row_ror:8 row_mask:0xf bank_mask:0xc")
    P = 120
    for si, base in enumerate((SM, SQ)):
        for c in range(3):
            o(f"v_add_f32_dpp v{P + 2 * c + si}, v{base + c}, v{base + c} row_shl:4 row_mask:0xf bank_mask:0x5")
    for si, base in enumerate((SM, SQ)):
        for c in range(3):
            o(f"v_add_f32_dpp v{P + 2 * c + si}, v{base + 3 + c}, v{base + 3 + c} row_shr:4 row_mask:0xf bank_mask:0xa")
    order = [P, P + 2, P + 4, P + 1, P + 3, P + 5]
    for perm in ("[1,0,3,2]", "[2,3,0,1]"):
        for v in order:
            o(f"v_add_f32_dpp v{v}, v{v}, v{v} quad_perm:{perm} row_mask:0xf bank_mask:0xf")
    o(f"v_lshrrev_b32 v12, 2, v{V_LANE}")
    o(f"v_mul_u32_u24 v12, 24, v12")
    o(f"s_mul_i32 s3, s{S_WAVE}, 384")
    o(f"s_add_u32 s3, s3, {PART}")
    o(f"v_add_u32 v12, s3, v12")
    o("s_mov_b32 exec_lo, 0x11111111")
    o("s_mov_b32 exec_hi, 0x11111111")
    for c in range(3):
        o(f"ds_write_b64 v12, v[{P + 2 * c}:{P + 2 * c + 1}] offset:{8 * c}")
    o("s_mov_b64 exec, -1")
    o(f"v_mul_u32_u24 v12, 48, v13")
    o(f"v_add_u32 v12, {SCSH}, v12")
    o("s_waitcnt lgkmcnt(0)")
    o("s_barrier")
    if cfg.stamps:
        o("s_memrealtime s[66:67]")
    import math
    k0 = -2.0 * math.log2(math.e) * math.sqrt(2.0 / math.pi)
    k1 = k0 * 0.044715
    f2u = lambda x: struct.unpack("<I", struct.pack("<f", x))[0]
    o(f"v_mov_b32 v14, {f2u(k0):#x}")
    o(f"v_mov_b32 v15, {f2u(k0):#x}")
    o(f"s_mov_b32 s50, {f2u(k1):#x}")
    o(f"s_mov_b32 s51, {f2u(k1):#x}")
    o("s_barrier")
    if cfg.stamps:
        o("s_memrealtime s[68:69]")
    SC, SH = 16, 28
    for i in range(3):
        o(f"ds_read_b128 v[{SC + 4 * i}:{SC + 4 * i + 3}], v12 offset:{16 * i}")
        o(f"ds_read_b128 v[{SH + 4 * i}:{SH + 4 * i + 3}], v12 offset:{192 + 16 * i}")
    o("s_waitcnt lgkmcnt(0)")
    for r in range(3):
        y0 = Y + 12 * r
        T = 40 + 12 * r
        PK = 100 + 8 * r
        pr = lambda b, c: f"v[{b + c}:{b + c + 1}]"
        for c in range(0, 12, 2):
            o(f"v_pk_fma_f32 {pr(y0, c)}, {pr(y0, c)}, {pr(SC, c)}, {pr(SH, c)}")
        for c in range(0, 12, 2):
            o(f"v_pk_mul_f32 {pr(T, c)}, {pr(y0, c)}, {pr(y0, c)}")
        for c in range(0, 12, 2):
            o(f"v_pk_fma_f32 {pr(T, c)}, {pr(T, c)}, s[50:51], v[14:15]")
        for c in range(0, 12, 2):
            o(f"v_pk_mul_f32 {pr(T, c)}, {pr(T, c)}, {pr(y0, c)}")
        for c in range(12):
            o(f"v_exp_f32 v{T + c}, v{T + c}")
        for c in range(0, 12, 2):
            o(f"v_pk_add_f32 {pr(T, c)}, {pr(T, c)}, 1.0 op_sel_hi:[1,0]")
        for c in range(12):
            o(f"v_rcp_f32 v{T + c}, v{T + c}")
        for c in range(0, 12, 2):
            o(f"v_pk_mul_f32 {pr(T, c)}, {pr(T, c)}, {pr(y0, c)}")
        for c in range(0, 12, 2):
            o(f"v_cvt_pk_bf16_f32 v{PK + c // 2}, v{T + c}, v{T + c + 1}")
        o(f"buffer_store_dwordx4 v[{PK}:{PK + 3}], v{V_OUT}, s[{SRD_O}:{SRD_O + 3}], 0 offen offset:{288 * r} {cfg.stflag}")
        o(f"buffer_store_dwordx2 v[{PK + 4}:{PK + 5}], v{V_OUT}, s[{SRD_O}:{SRD_O + 3}], 0 offen offset:{288 * r + 16} {cfg.stflag}")
    if cfg.stamps:
        o("s_memrealtime s[76:77]")
        o("s_waitcnt vmcnt(0)")
        o("s_memrealtime s[70:71]")
        o("s_waitcnt lgkmcnt(0)")
        o("s_sub_u32 s74, s74, s72")
        if cfg.trace:
            o(f"s_mul_i32 s3, s{S_U}, 1280")
            o(f"s_add_u32 s3, s3, {2 * STAMP_OFF + 768}")
            o(f"s_lshr_b32 s47, s{S_WAVE}, 1")
            o("s_lshl_b32 s47, s47, 8")
            o("s_add_u32 s3, s3, s47")
            o(f"v_lshlrev_b32 v1, 2, v{V_LANE}")
            o("v_writelane_b32 v190, s72, 62")
            o("v_writelane_b32 v190, s74, 63")
            o(f"buffer_store_dword v190, v1, s[{SRD_WS}:{SRD_WS + 3}], s3 offen")
        o(f"s_cmp_lg_u32 s{S_WAVE}, 0")
        o("s_cbranch_scc1 L_end")
        if cfg.enc is not None:
            if cfg.encwg is not None:
                o(f"s_cmp_lg_u32 s{S_U}, {cfg.encwg}")
                o("s_cbranch_scc1 L_end")
            sr = (60, 62, 64, 66, 68, 76, 70)[cfg.enc]
            o(f"s_sub_u32 s3, s{sr}, s60")
            if cfg.probe is not None and cfg.probe < 5:
                a, b = ((60, 82), (82, 84), (84, 86), (86, 88), (88, 90))[cfg.probe]
                o(f"s_sub_u32 s3, s{b}, s{a}")
                o("s_mul_i32 s3, s3, 2")
            elif cfg.probe == 5:
                o("v_mov_b32 v2, 0")
                o("global_load_dwordx2 v[4:5], v2, s[16:17] offset:240 sc1")
                o("s_waitcnt vmcnt(0)")
                o("v_not_b32 v5, v5")
                o("v_sub_u32 v4, v4, v5")
                o("s_nop 0")
                o("v_readfirstlane_b32 s3, v4")
                o("s_mul_i32 s3, s3, 2")
            o("s_mul_i32 s3, s3, 10")
            o("s_add_u32 s3, s3, 6000")
            o("s_add_u32 s3, s3, s60")
            o.label("L_enc")
            o("s_memrealtime s[78:79]")
            o("s_waitcnt lgkmcnt(0)")
            o("s_sub_u32 s78, s78, s3")
            o("s_cmp_lt_i32 s78, 0")
            o("s_cbranch_scc1 L_enc")
        o(f"s_mul_i32 s3, s{S_U}, 32")
        o(f"s_add_u32 s3, s3, {STAMP_OFF}")
        o("v_mov_b32 v2, 0")
        o("s_mov_b64 exec, 1")
        for i, s in enumerate((60, 62, 64, 66, 68, 76, 70, 74)):
            o(f"v_mov_b32 v1, s{s}")
            o(f"buffer_store_dword v1, v2, s[{SRD_WS}:{SRD_WS + 3}], s3 offen offset:{4 * i}")
    o.label("L_end")
    o("s_endpgm")
    body = o.text() + "\n" + stubs.text() + "\nL_codeend:\n    s_endpgm"
    head = open("cdna_kernels/" + KNAME + ".s.ref").read().split("; Override launch")[0]
    return f"""{head}; @launch grid=(256,1,1) block=(512,1,1) lds={LDS_BYTES}
.amdgcn_target "amdgcn-amd-amdhsa--gfx950"
.text
.globl {KNAME}_kernel
.p2align 8
.type {KNAME}_kernel,@function
{KNAME}_kernel:
{body}
.section .rodata,"a"
.p2align 6
.amdhsa_kernel {KNAME}_kernel
  .amdhsa_next_free_vgpr 200
  .amdhsa_next_free_sgpr 96
  .amdhsa_accum_offset 200
  .amdhsa_group_segment_fixed_size 0
  .amdhsa_kernarg_size 64
  .amdhsa_user_sgpr_count 2
  .amdhsa_user_sgpr_kernarg_segment_ptr 1
  .amdhsa_system_sgpr_workgroup_id_x 1
  .amdhsa_float_denorm_mode_32 3
.end_amdhsa_kernel
"""


if __name__ == "__main__":
    out = sys.argv[1]
    kw = json.loads(sys.argv[2]) if len(sys.argv) > 2 else {}
    open(out, "w").write(generate(Cfg(**kw)))
```
